```python
import torch

def _softmax(x, axis=-1):
    return torch.softmax(x, dim=axis)
def _gelu(x):
    return torch.nn.functional.gelu(x, approximate="tanh")
def _silu(x):
    return torch.nn.functional.silu(x)
def _sigmoid(x):
    return torch.sigmoid(x)
def _layernorm(x, axis=-1, eps=1e-5):
    m = x.mean(dim=axis, keepdim=True)
    v = x.var(dim=axis, keepdim=True, unbiased=False)
    return (x - m) / torch.sqrt(v + eps)
def _scatter_add(tgt, idx, src, axis=0):
    return tgt.clone().index_add_(axis, idx, src)
def _segment_sum(src, seg, n):
    out = torch.zeros((n,) + src.shape[1:], dtype=src.dtype)
    return out.index_add_(0, seg, src)
def _pad(x, pw):
    flat = tuple(v for pair in reversed(pw) for v in pair)
    return torch.nn.functional.pad(x, flat)

kernel_name = 'standalone__gqa_softmax__near_ridge'

def setup_inputs():

    _w = (lambda a: (lambda t: t.to(torch.bfloat16) if t.is_floating_point() else t)(torch.as_tensor(a)))
    B, Hq, Hkv, Sq, Sk, D = 8, 32, 32, 736, 736, 128
    return {
        "q": _w((lambda *s: torch.randn(*s, dtype=torch.bfloat16) * 0.8)(B, Hq, Sq, D)),
        "k": _w((lambda *s: torch.randn(*s, dtype=torch.bfloat16) * 0.8)(B, Hkv, Sk, D)),
        "v": _w((lambda *s: torch.randn(*s, dtype=torch.bfloat16) * 0.05)(B, Hkv, Sk, D)),
    }

def reference(q, k, v):
    B, Hq, Sq, D = q.shape
    Hkv = k.shape[1]
    rep = Hq // Hkv
    k = (lambda x, n, axis: torch.repeat_interleave(x, n, dim=axis))(k, rep, axis=1)
    v = (lambda x, n, axis: torch.repeat_interleave(x, n, dim=axis))(v, rep, axis=1)
    scale = D ** -0.5
    scores = torch.einsum("bhqd,bhkd->bhqk", q, k) * scale
    p = _softmax(scores, axis=-1)
    return torch.einsum("bhqk,bhkd->bhqd", p, v)
```

```python
import re
TRANS = ('v_exp_f32', 'v_log_f32', 'v_rcp_f32', 'v_rsq_f32', 'v_sqrt_f32')
def regs(tok):
    tok = tok.strip()
    neg = tok.lstrip('-')
    m = re.fullmatch(r'([vas])\[(\d+):(\d+)\]', neg)
    if m: return {(m.group(1), i) for i in range(int(m.group(2)), int(m.group(3)) + 1)}
    m = re.fullmatch(r'([vas])(\d+)', neg)
    if m: return {(m.group(1), int(m.group(2)))}
    if neg == 'vcc': return {('s', 'vcc')}
    if neg == 'm0': return {('s', 'm0')}
    if neg == 'exec': return {('s', 'exec')}
    return set()
class I: pass
def parse(line):
    line = line.split(';')[0].strip()
    if not line or line.endswith(':') or line.startswith('.'): return None
    p = line.split(None, 1)
    op = p[0]; rest = p[1] if len(p) > 1 else ''
    ops = [x.strip() for x in rest.split(',')] if rest else []
    ops2 = []
    for o in ops:
        ops2.append(o.split()[0] if o else o)
    i = I(); i.op = op; i.text = line; i.ws = 1
    i.w = set(); i.r = set(); i.kind = 'other'; i.A = i.B = i.C = set()
    if op == 's_nop': i.ws = int(ops2[0]) + 1; i.kind = 'nop'
    elif op.startswith('v_mfma'):
        i.kind = 'mfma'; i.w = regs(ops2[0]); i.A = regs(ops2[1]); i.B = regs(ops2[2]); i.C = regs(ops2[3])
        i.r = i.A | i.B | i.C; i.npass = 4 if '16x16x32' in op else 8
    elif op.startswith('ds_read'):
        i.kind = 'dsr'; i.w = regs(ops2[0]); i.r = regs(ops2[1])
    elif op.startswith('ds_write') or op.startswith('ds_or') or op.startswith('ds_add'):
        i.kind = 'dsw'; i.r = regs(ops2[0]) | regs(ops2[1])
    elif op.startswith('buffer_load'):
        if ' lds' in line:
            i.kind = 'dma'; i.r = regs(ops2[0]) | regs(ops2[1]) | regs(ops2[2]) | {('s', 'm0')}
        else:
            i.kind = 'vload'; i.w = regs(ops2[0]); i.r = regs(ops2[1]) | regs(ops2[2]) | regs(ops2[3])
    elif op.startswith('buffer_store'):
        i.kind = 'vstore'; i.data = regs(ops2[0]); i.r = regs(ops2[0]) | regs(ops2[1]) | regs(ops2[2]) | regs(ops2[3])
    elif op.startswith('v_permlane'):
        i.kind = 'valu'; i.w = regs(ops2[0]) | regs(ops2[1]); i.r = set(i.w)
    elif op.startswith('v_'):
        i.kind = 'valu'; i.w = regs(ops2[0])
        for o in ops2[1:]: i.r |= regs(o)
        if op.startswith('v_fmac') or op.startswith('v_writelane'): i.r |= i.w
        if op.startswith('v_cndmask') and len(ops2) == 3: i.r |= {('s', 'vcc')}
    elif op.startswith('s_waitcnt'):
        i.kind = 'wait'
        m = re.search(r'lgkmcnt\((\d+)\)', line); i.lgkm = int(m.group(1)) if m else None
        m = re.search(r'vmcnt\((\d+)\)', line); i.vm = int(m.group(1)) if m else None
    elif op.startswith('s_'):
        i.kind = 'salu'
        if ops2 and not op.startswith(('s_cmp', 's_cbranch', 's_branch', 's_barrier', 's_setprio', 's_endpgm')):
            i.w = regs(ops2[0])
            for o in ops2[1:]: i.r |= regs(o)
    return i
def check(lines, name=''):
    ins = [x for x in (parse(l) for l in lines) if x]
    errs = []
    def dist(a, b):
        return sum(ins[k].ws for k in range(a + 1, b))
    for b, y in enumerate(ins):
        d = 0
        a = b - 1
        while a >= 0 and d < 24:
            x = ins[a]
            def need(n, why):
                if d < n: errs.append(f"{name}: {why}: need {n} have {d}\n    {x.text}\n    {y.text}")
            if x.kind == 'valu' and y.kind == 'mfma' and (x.w & y.r): need(2, 'valu->mfma')
            if x.kind == 'mfma':
                big = 8 if x.npass == 4 else 12
                if y.kind in ('valu',) and (x.w & (y.r | y.w)): need(big, 'mfma D->valu')
                if y.kind in ('dsr', 'dsw', 'dma', 'vload', 'vstore') and (x.w & (y.r | y.w)): need(big, 'mfma D->mem')
                if y.kind == 'mfma':
                    if x.w & (y.A | y.B): need(big, 'mfma D->mfma AB')
                    if (x.w & y.C) and x.w != y.C: need(big - 2, 'mfma D->mfma C partial')
                if y.kind == 'valu' and (x.C & y.w): need(3 if x.npass == 4 else 7, 'mfma C WAR')
            if x.kind == 'valu' and x.op in TRANS and y.kind in ('valu',) and y.op not in TRANS and (x.w & y.r): need(1, 'trans->valu')
            if x.kind == 'valu' and y.op.startswith('v_permlane') and (x.w & y.r): need(2, 'valu->permlane')
            if x.kind == 'valu' and y.op.startswith(('v_readfirstlane', 'v_readlane')) and (x.w & y.r): need(1, 'valu->readlane')
            if x.kind == 'valu' and 'dpp' in y.op and (x.w & y.r): need(2, 'valu->dpp')
            sw = {r for r in x.w if r[0] == 's'}
            if x.kind == 'valu' and sw:
                if y.kind == 'valu' and (sw & y.r): need(2, 'valu sgpr->valu')
                if y.kind in ('dma', 'vload', 'vstore') and (sw & y.r): need(5, 'valu sgpr->vmem')
            if x.kind == 'salu' and ('s', 'm0') in x.w and y.kind == 'dma': need(1, 'm0->dma')
            if x.kind == 'vstore' and y.kind in ('valu', 'mfma', 'dsr', 'vload') and (x.data & y.w): need(2, 'store data WAR')
            d += x.ws
            a -= 1
    q = []
    vq = []
    for y in ins:
        if y.kind == 'wait':
            if y.lgkm is not None:
                while len(q) > y.lgkm: q.pop(0)
            if y.vm is not None:
                while len(vq) > y.vm: vq.pop(0)
            continue
        pend = set().union(*[x.w for x in q]) if q else set()
        if pend & (y.r | y.w): errs.append(f"{name}: use of pending ds_read result\n    {y.text}")
        pend = set().union(*[x.w for x in vq]) if vq else set()
        if pend & (y.r | y.w): errs.append(f"{name}: use of pending vload result\n    {y.text}")
        if y.kind in ('dsr', 'dsw'): q.append(y)
        if y.kind in ('dma', 'vload', 'vstore'): vq.append(y)
        if len(q) > 15 and y.kind in ('dsr', 'dsw'): pass
    return errs
```

```python
import sys, struct, math
import hazcheck

KN = "standalone__gqa_softmax__near_ridge_kernel"
HEAD_BYTES = 736 * 256
TENSOR_BYTES = 256 * HEAD_BYTES
OOB = 0x7F000000
NT = 23

O_ = 0; S_ = 192; P_ = 208; NEGM = 216; L_ = 240
KA = 246; VA = 248; DMAOFF = 252; OST = 253; T0 = 254; T1 = 255
QA = 0; KF = 96; VF = 160; ONES = 224; LACC = 228
SRD_K = 16; SRD_V = 20; SRD_Q = 24; SRD_O = 28
sWAVE = 32; sKV = 33; sPOS = 34; sNEXTKV = 35; sQOFF = 36; sQM0 = 37; sW1K = 38; sCNT = 39
sSCALE = 40; sOROW = 41; sNHEADOFF = 42; sNROW = 43; sMORE = 44; sTMP = 45
sBAD = 46
sTHR = 48; sQBASE = 49; sCUR = 50; sFLAGS = 51; sMODE = 52; sHEADOFF = 53; sROW = 54; sT2 = 55
sH0 = 56; sR0 = 57; sH1 = 58; sR1 = 59; sDONE = 60; sT3 = 61
STAMP0 = 64
LDS_Q = 65536
LDS_TOTAL = 163840

def v(b, n=1): return f"v{b}" if n == 1 else f"v[{b}:{b+n-1}]"
def a(b, n=1): return f"a{b}" if n == 1 else f"a[{b}:{b+n-1}]"
def s(b, n=1): return f"s{b}" if n == 1 else f"s[{b}:{b+n-1}]"
def f32bits(x): return struct.unpack("<I", struct.pack("<f", x))[0]

class Gen:
    def __init__(self, msum=(), diag=False, opt=None):
        self.L = []
        self.msum = set(msum)
        self.diag = diag
        self.nstamp = 0
        self.opt = opt or {}
    def e(self, t): self.L.append("  " + t)
    def label(self, t): self.L.append(t + ":")
    def stamp(self, idx):
        if self.diag:
            self.e(f"s_memtime {s(STAMP0 + 2*idx, 2)}")
    def mf_qk(self, qb, kvb, ks, par, sbuf, cinit='negm', dst=None):
        d = (S_ + 8 * sbuf + 4 * kvb) if dst is None else dst
        if ks == 0: c = v(NEGM + 4 * qb, 4) if cinit == 'negm' else "0"
        else: c = v(d, 4)
        return f"v_mfma_f32_16x16x32_bf16 {v(d,4)}, {a(KF + 32*par + 16*kvb + 4*ks, 4)}, {a(QA + 16*qb + 4*ks, 4)}, {c}"
    def mf_pv(self, qb, db, par, zero=False, dummy=False):
        d = O_ + 32 * qb + 4 * db
        pb = P_ + 4 * (qb & 1)
        c = "0" if zero else v(d, 4)
        aop = v(pb, 4) if dummy else a(VF + 32 * par + 4 * db, 4)
        return f"v_mfma_f32_16x16x32_bf16 {v(d,4)}, {aop}, {v(pb,4)}, {c}"
    def mf_sum(self, qb, zero=False):
        d = LACC + 4 * qb
        pb = P_ + 4 * (qb & 1)
        return f"v_mfma_f32_16x16x32_bf16 {a(d,4)}, {a(ONES,4)}, {v(pb,4)}, {'0' if zero else a(d,4)}"
    def rd_k(self, slot, par, kvb, ks):
        off = slot * 16384 + (ks >> 1) * 4096 + kvb * 2048
        return f"ds_read_b128 {a(KF + 32*par + 16*kvb + 4*ks, 4)}, {v(KA + (ks & 1))} offset:{off}"
    def rd_v(self, slot, par, db, jh):
        off = slot * 16384 + 8192 + (db >> 2) * 4096 + jh * 2048
        return f"ds_read_b64_tr_b16 {a(VF + 32*par + 4*db + 2*jh, 2)}, {v(VA + (db & 3))} offset:{off}"
    def dma_kv(self, slot, isv, h):
        base = slot * 16384 + isv * 8192 + h * (4096 - 128)
        srd = SRD_V if isv else SRD_K
        off = " offset:128" if h else ""
        return (f"s_add_u32 m0, {s(sW1K)}, {base}",
                f"buffer_load_dwordx4 {v(DMAOFF)}, {s(srd,4)}, {s(sKV)} offen{off} lds")
    def dma_q(self, h):
        off = " offset:128" if h else ""
        m0 = f"s_add_u32 m0, {s(sQM0)}, {12288 - 128}" if h else f"s_mov_b32 m0, {s(sQM0)}"
        return (m0, f"buffer_load_dwordx4 {v(DMAOFF)}, {s(SRD_Q,4)}, {s(sQOFF)} offen{off} lds")
    def q_adv(self):
        return [f"s_add_u32 {s(sQM0)}, {s(sQM0)}, 1024", f"s_add_u32 {s(sQOFF)}, {s(sQOFF)}, 2048"]
    def kv_adv(self):
        return [f"s_add_u32 {s(sPOS)}, {s(sPOS)}, 1",
                f"s_add_u32 {s(sKV)}, {s(sKV)}, 8192",
                f"s_cmp_eq_u32 {s(sPOS)}, {NT}",
                f"s_cselect_b32 {s(sKV)}, {OOB}, {s(sKV)}",
                f"s_cmp_eq_u32 {s(sPOS)}, {NT+1}",
                f"s_cselect_b32 {s(sKV)}, {s(sNEXTKV)}, {s(sKV)}"]
    def iteration(self, ph, first=False, last=False, vm_end=None, tail_salu=(), nq=1):
        par = ph & 1; rslot = (ph + 1) & 3; wslot = ph & 3
        N = 96
        mf = [None] * N; sal = [[] for _ in range(N)]; vec = [[] for _ in range(N)]
        bonus = {}
        for p in range(6):
            for kvb in range(2):
                for ks in range(4):
                    mf[16 * p + 4 * kvb + ks] = self.mf_qk(p, kvb, ks, par, p & 1)
            qb = (p - 1) % 6
            vpar = par if p > 0 else par ^ 1
            for db in range(8):
                mf[16 * p + 8 + db] = self.mf_pv(qb, db, vpar, zero=first, dummy=(first and p == 0))
            if qb in self.msum:
                bonus[16 * p + 15] = [self.mf_sum(qb, zero=first), [], []]
        for p in range(-1, 6):
            qb = p % 6
            if p == -1 and first: continue
            for e_ in range(8):
                g = 16 * p + 7 + 2 * e_
                r = S_ + 8 * (qb & 1) + e_
                if 0 <= g < N: vec[g].append(f"v_exp_f32 {v(r)}, {v(r)}")
                g += 1
                if 0 <= g < N:
                    if e_ & 1: vec[g].append(f"v_cvt_pk_bf16_f32 {v(P_ + 4*(qb&1) + e_//2)}, {v(r-1)}, {v(r)}")
                    if qb not in self.msum:
                        vec[g].append(f"v_add_f32 {v(L_+qb)}, {v(r)}, {v(L_+qb)}")
        if not last:
            rds = [self.rd_k(rslot, par ^ 1, kvb, ks) for kvb in range(2) for ks in range(4)]
            rds += [self.rd_v(rslot, par ^ 1, db, jh) for db in range(8) for jh in range(2)]
            pos = [4 * i for i in range(24)]
            for i, r in enumerate(rds):
                g = pos[i]
                if g >= 88: g -= 8
                vec[g].insert(0, r)
            for g in (80, 84):
                mv = [x for x in vec[g] if x.startswith("v_add")]
                for x in mv:
                    vec[g].remove(x); vec[g + 8].append(x)
        dm = []
        if not last:
            for i in range(nq):
                h = (ph + i) & 1 if not first else i & 1
                dm.append((self.dma_q(h), self.q_adv() if h else []))
        for isv in range(2):
            for h in range(2):
                dm.append((self.dma_kv(wslot, isv, h), []))
        dm[-1] = (dm[-1][0], self.kv_adv())
        cand = []
        for g in range(2, N - 12):
            if len(vec[g]) == 0: cand.append((0, g, None))
            if g in bonus: cand.append((0, g, 'b'))
        for g in range(2, N - 12, 2):
            if len(vec[g]) == 1 and not vec[g][0].startswith(("v_exp", "ds_")): cand.append((1, g, None))
        dflt = [6 + 12 * i for i in range(7)]
        for g in dflt: cand.append((2, g, None))
        cand.sort(key=lambda x: x[0])
        chosen = []
        for c in cand:
            if len(chosen) == len(dm): break
            if all(abs(c[1] - o[1]) >= 3 for o in chosen): chosen.append(c)
        chosen.sort(key=lambda x: x[1])
        assert len(chosen) == len(dm)
        post = []
        for (c, ((m0, d), adv)) in zip(chosen, dm):
            g = c[1]
            if c[2] == 'b':
                sal[g].append(m0); bonus[g][2].append(d)
            else:
                sal[g - 1].append(m0); vec[g].insert(0, d)
            post.append((g + 1, adv))
        for g, adv in post:
            for x in adv:
                while sal[g]: g += 1
                sal[g].append(x); g += 1
        g = N - 8
        for x in tail_salu:
            while sal[g]: g += 1
            sal[g].append(x); g += 1
        if vm_end is not None:
            assert not sal[N - 2] and not sal[N - 1]
            sal[N - 2].append(f"s_waitcnt vmcnt({vm_end}) lgkmcnt(0)")
            sal[N - 1].append("s_barrier")
        for g in range(N):
            self.e(mf[g])
            for x in sal[g]: self.e(x)
            for x in vec[g]: self.e(x)
            if g in bonus:
                self.e(bonus[g][0])
                for x in bonus[g][1] + bonus[g][2]: self.e(x)
    def drain(self, par):
        qb = 5
        for e_ in range(5, 8):
            r = S_ + 8 + e_
            self.e(f"v_exp_f32 {v(r)}, {v(r)}")
        self.e("s_nop 0")
        for e_ in (5, 7):
            r = S_ + 8 + e_
            self.e(f"v_cvt_pk_bf16_f32 {v(P_ + 4 + e_//2)}, {v(r-1)}, {v(r)}")
        if qb not in self.msum:
            for e_ in range(4, 8):
                self.e(f"v_add_f32 {v(L_+qb)}, {v(S_+8+e_)}, {v(L_+qb)}")
        else:
            self.e("s_nop 1")
        for db in range(8): self.e(self.mf_pv(qb, db, par))
        if qb in self.msum: self.e(self.mf_sum(qb))
    def xsum(self, r, op="v_add_f32"):
        for sw in ("v_permlane16_swap_b32", "v_permlane32_swap_b32"):
            self.e(f"v_mov_b32 {v(T0)}, {v(r)}")
            self.e("s_nop 1")
            self.e(f"{sw} {v(r)}, {v(T0)}")
            self.e(f"{op} {v(r)}, {v(r)}, {v(T0)}")
    def epilogue(self):
        for qb in range(6):
            l = L_ + qb
            if qb == 5: self.e("s_nop 7")
            if qb in self.msum:
                self.e(f"v_accvgpr_read_b32 {v(l)}, {a(LACC + 4*qb)}")
            else:
                self.xsum(l)
            self.e(f"v_cmp_nle_f32 vcc, {v(l)}, {v(T1)}")
            self.e(f"v_rcp_f32 {v(l)}, {v(l)}")
            self.e(f"s_or_b64 {s(sBAD,2)}, {s(sBAD,2)}, vcc")
            self.e(f"s_add_u32 {s(sTMP)}, {s(sOROW)}, {qb * 4096}")
            o = O_ + 32 * qb
            for t in range(4):
                for i in range(8): self.e(f"v_mul_f32 {v(o+8*t+i)}, {v(l)}, {v(o+8*t+i)}")
                for i in range(4): self.e(f"v_cvt_pk_bf16_f32 {v(o+8*t+i)}, {v(o+8*t+2*i)}, {v(o+8*t+2*i+1)}")
                self.e("s_nop 1")
                self.e(f"v_permlane16_swap_b32 {v(o+8*t)}, {v(o+8*t+2)}")
                self.e(f"v_permlane16_swap_b32 {v(o+8*t+1)}, {v(o+8*t+3)}")
                self.e(f"buffer_store_dwordx4 {v(o+8*t,4)}, {v(OST)}, {s(SRD_O,4)}, {s(sTMP)} offen offset:{64*t}")
    def load_q(self, waits):
        A0 = S_; A1 = S_ + 1
        self.e(f"v_add_u32 {v(A0)}, {s(sQBASE)}, {v(KA)}")
        self.e(f"v_add_u32 {v(A1)}, {s(sQBASE)}, {v(KA+1)}")
        for qb in range(6):
            if waits[qb] is not None: self.e(f"s_waitcnt vmcnt({waits[qb]})")
            t = O_ + 32 * qb + 8
            t = O_ + 32 * qb
            for ks in range(4):
                self.e(f"ds_read_b128 {v(t+4*ks,4)}, {v(A0 + (ks&1))} offset:{(ks>>1)*12288 + qb*2048}")
            self.e("s_waitcnt lgkmcnt(0)")
            for i in range(16):
                x = t + i; y = t + 16 + (i & 1)
                self.e(f"v_lshlrev_b32 {v(y)}, 16, {v(x)}")
                self.e(f"v_and_b32 {v(x)}, 0xffff0000, {v(x)}")
                self.e(f"v_mul_f32 {v(y)}, {s(sSCALE)}, {v(y)}")
                self.e(f"v_mul_f32 {v(x)}, {s(sSCALE)}, {v(x)}")
                self.e(f"v_cvt_pk_bf16_f32 {v(x)}, {v(y)}, {v(x)}")
                self.e(f"v_accvgpr_write_b32 {a(QA + 16*qb + i)}, {v(x)}")
    def read_tile0(self):
        for kvb in range(2):
            for ks in range(4): self.e(self.rd_k(0, 0, kvb, ks))
        for db in range(8):
            for jh in range(2): self.e(self.rd_v(0, 0, db, jh))
            if db == 3: self.e("s_waitcnt lgkmcnt(8)")
    def first_max(self):
        for qb in range(6):
            for ks in range(4): self.e(self.mf_qk(qb, 0, ks, 0, 0, cinit='zero', dst=O_ + 4 * qb))
        self.e("s_nop 7")
        for qb in range(6):
            t = O_ + 4 * qb
            self.e(f"v_max3_f32 {v(t)}, {v(t)}, {v(t+1)}, {v(t+2)}")
            self.e(f"v_max_f32 {v(t)}, {v(t)}, {v(t+3)}")
            self.xsum(t, "v_max_f32")
            for i in range(4): self.e(f"v_sub_f32 {v(NEGM+4*qb+i)}, 0, {v(t)}")
    def init_item(self):
        for qb in range(6): self.e(f"v_mov_b32 {v(L_+qb)}, 0")
        for i in range(4): self.e(f"v_mov_b32 {v(P_+4+i)}, 0")
    def set_srd_base(self, srd, ptr, off):
        self.e(f"s_add_u32 {s(srd)}, {s(ptr)}, {s(off)}")
        self.e(f"s_addc_u32 {s(srd+1)}, {s(ptr+1)}, 0")
    def setup_qdma(self, hoff, row):
        self.set_srd_base(SRD_Q, 4, hoff)
        self.e(f"s_mul_i32 {s(sTMP)}, {s(sWAVE)}, 88")
        self.e(f"s_add_u32 {s(sTMP)}, {s(sTMP)}, {s(row)}")
        self.e(f"s_lshl_b32 {s(sQOFF)}, {s(sTMP)}, 8")
        self.e(f"s_mov_b32 {s(sQM0)}, {s(sQBASE)}")
    def setup_out(self):
        self.set_srd_base(SRD_O, 10, sHEADOFF)
        self.e(f"s_mul_i32 {s(sTMP)}, {s(sWAVE)}, 96")
        self.e(f"s_add_u32 {s(sTMP)}, {s(sTMP)}, {s(sROW)}")
        self.e(f"s_lshl_b32 {s(sOROW)}, {s(sTMP)}, 8")
    def emit_dma(self, pair):
        self.e(pair[0]); self.e("s_nop 0"); self.e(pair[1])
    def dma_tile(self, slot, which=(0, 1), adv=True):
        for isv in which:
            for h in range(2): self.emit_dma(self.dma_kv(slot, isv, h))
        if adv:
            for x in self.kv_adv(): self.e(x)

    def build(self):
        e = self.e
        e("s_cmp_ge_u32 s2, 256"); e("s_cbranch_scc1 L_end")
        e("s_load_dwordx4 s[4:7], s[0:1], 0"); e("s_load_dwordx4 s[8:11], s[0:1], 16"); e("s_load_dwordx4 s[12:15], s[0:1], 32")
        if self.diag: e(f"s_memrealtime {s(96,2)}")
        self.stamp(0)
        e("v_lshrrev_b32 v1, 6, v0"); e("v_and_b32 v2, 63, v0")
        e(f"v_readfirstlane_b32 {s(sWAVE)}, v1")
        e("v_and_b32 v3, 15, v2")
        e("v_lshrrev_b32 v4, 4, v2")
        e("v_and_b32 v5, 6, v3")
        e("v_xor_b32 v6, v4, v5")
        e("v_lshlrev_b32 v6, 4, v6")
        e(f"v_lshl_add_u32 {v(KA)}, v3, 7, v6")
        e(f"v_xor_b32 {v(KA+1)}, 64, {v(KA)}")
        e("v_lshrrev_b32 v5, 2, v2")
        e("v_and_b32 v6, 6, v5")
        e("v_lshlrev_b32 v6, 4, v6")
        e("v_and_b32 v7, 3, v2")
        e("v_lshlrev_b32 v7, 3, v7")
        e("v_lshl_add_u32 v7, v5, 7, v7")
        e(f"v_add_u32 {v(VA)}, v6, v7")
        for i in range(1, 4): e(f"v_xor_b32 {v(VA+i)}, {32*i}, {v(VA)}")
        e("v_lshrrev_b32 v5, 3, v2")
        e("v_and_b32 v6, 6, v5")
        e("v_and_b32 v7, 7, v2")
        e("v_xor_b32 v6, v6, v7")
        e("v_lshlrev_b32 v6, 4, v6")
        e("v_lshrrev_b32 v5, 3, v0")
        e(f"v_lshl_add_u32 {v(DMAOFF)}, v5, 8, v6")
        e("v_and_b32 v5, 1, v4"); e("v_lshlrev_b32 v5, 5, v5")
        e("v_lshrrev_b32 v6, 1, v4"); e("v_lshl_add_u32 v5, v6, 4, v5")
        e(f"v_lshl_add_u32 {v(OST)}, v3, 8, v5")
        e(f"v_mov_b32 {v(T1)}, {hex(f32bits(2.0**64))}")
        e("v_mov_b32 v5, 0x3f803f80")
        for i in range(4): e(f"v_accvgpr_write_b32 {a(ONES+i)}, v5")
        e(f"s_lshl_b32 {s(sW1K)}, {s(sWAVE)}, 10")
        e(f"s_mul_i32 {s(sQBASE)}, {s(sWAVE)}, 24576")
        e(f"s_add_u32 {s(sQBASE)}, {s(sQBASE)}, {LDS_Q}")
        e(f"s_mov_b32 {s(sSCALE)}, {hex(f32bits(math.log2(math.e) / math.sqrt(128.0)))}")
        e(f"s_and_b32 {s(sTMP)}, s2, 7"); e(f"s_lshl_b32 {s(sTMP)}, {s(sTMP)}, 5")
        e(f"s_lshr_b32 {s(sT2)}, s2, 4"); e(f"s_add_u32 {s(sTMP)}, {s(sTMP)}, {s(sT2)}")
        e(f"s_mul_i32 {s(sH0)}, {s(sTMP)}, {HEAD_BYTES}")
        e(f"s_add_u32 {s(sH1)}, {s(sH0)}, {16 * HEAD_BYTES}")
        e(f"s_bfe_u32 {s(sT2)}, s2, 0x10003")
        e(f"s_mul_i32 {s(sR0)}, {s(sT2)}, 384")
        e(f"s_sub_u32 {s(sR1)}, 384, {s(sR0)}")
        e(f"s_mov_b64 {s(sBAD,2)}, 0"); e(f"s_mov_b32 {s(sFLAGS)}, 0"); e(f"s_mov_b32 {s(sCUR)}, 0")
        e("s_waitcnt lgkmcnt(0)")
        for srd, ptr in ((SRD_K, 6), (SRD_V, 8)):
            e(f"s_mov_b32 {s(srd)}, {s(ptr)}"); e(f"s_mov_b32 {s(srd+1)}, {s(ptr+1)}")
            e(f"s_mov_b32 {s(srd+2)}, {TENSOR_BYTES}"); e(f"s_mov_b32 {s(srd+3)}, 0x20000")
        for srd in (SRD_Q, SRD_O):
            e(f"s_mov_b32 {s(srd+2)}, {HEAD_BYTES}"); e(f"s_mov_b32 {s(srd+3)}, 0x20000")
        e(f"s_mov_b32 {s(sHEADOFF)}, {s(sH0)}"); e(f"s_mov_b32 {s(sROW)}, {s(sR0)}")
        e(f"s_mov_b32 {s(sNEXTKV)}, {s(sH1)}"); e(f"s_mov_b32 {s(sMORE)}, 1")
        self.setup_qdma(sHEADOFF, sROW)
        self.setup_out()
        e(f"s_mov_b32 {s(sKV)}, {s(sHEADOFF)}"); e(f"s_mov_b32 {s(sPOS)}, 0")
        self.dma_tile(0, which=(0,), adv=False)
        for R in range(12):
            for h in range(2): self.emit_dma(self.dma_q(h))
            for x in self.q_adv(): e(x)
        self.dma_tile(0, which=(1,))
        self.dma_tile(1); self.dma_tile(2); self.dma_tile(3)
        self.load_q([(5 - qb) * 4 + 14 for qb in range(6)])
        self.stamp(1)
        e("s_waitcnt vmcnt(12)"); e("s_barrier")
        self.read_tile0()
        self.setup_qdma(sH1, sR1)
        self.first_max()
        self.init_item()
        e("s_waitcnt vmcnt(8) lgkmcnt(0)"); e("s_barrier")
        self.label("L_item")
        self.stamp(2)
        i0 = len(self.L)
        self.iteration(0, first=True, vm_end=11, nq=3, tail_salu=[f"s_mov_b32 {s(sCNT)}, 6"])
        self.L.append(".p2align 6") if False else None
        self.label("L_loop")
        l0 = len(self.L)
        self.iteration(1, vm_end=10, tail_salu=[f"s_sub_u32 {s(sCNT)}, {s(sCNT)}, 1", f"s_cmp_eq_u32 {s(sCNT)}, 0"])
        e("s_cbranch_scc1 L_last")
        l1 = len(self.L)
        self.iteration(2, vm_end=10)
        self.iteration(3, vm_end=10)
        self.iteration(0, vm_end=10)
        e("s_branch L_loop")
        l2 = len(self.L)
        self.label("L_last")
        self.iteration(2, last=True)
        self.drain(0)
        self.stamp(3)
        self.dma_tile(3)
        self.epilogue()
        l3 = len(self.L)
        self.stamp(4)
        e(f"s_cmp_lg_u64 {s(sBAD,2)}, 0")
        e(f"s_cselect_b32 {s(sTMP)}, 1, 0")
        e(f"s_lshl_b32 {s(sTMP)}, {s(sTMP)}, {s(sCUR)}")
        e(f"s_or_b32 {s(sFLAGS)}, {s(sFLAGS)}, {s(sTMP)}")
        e(f"s_mov_b64 {s(sBAD,2)}, 0")
        e(f"s_cmp_eq_u32 {s(sMORE)}, 0"); e("s_cbranch_scc1 L_fin")
        e(f"s_mov_b32 {s(sMORE)}, 0"); e(f"s_mov_b32 {s(sCUR)}, 1")
        e(f"s_mov_b32 {s(sHEADOFF)}, {s(sH1)}"); e(f"s_mov_b32 {s(sROW)}, {s(sR1)}")
        e(f"s_mov_b32 {s(sNEXTKV)}, {OOB}"); e(f"s_mov_b32 {s(sPOS)}, 4")
        self.setup_out()
        self.load_q([36, None, None, None, None, None])
        e("s_barrier")
        self.read_tile0()
        e(f"s_mov_b32 {s(SRD_Q+2)}, 0")
        e(f"s_mov_b32 {s(sQM0)}, {s(sQBASE)}")
        self.first_max()
        self.init_item()
        e("s_waitcnt vmcnt(32) lgkmcnt(0)"); e("s_barrier")
        if self.diag:
            e("s_waitcnt lgkmcnt(0)")
            for i in range(4, 10): e(f"s_mov_b32 {s(STAMP0 + 6 + i)}, {s(STAMP0 + i)}")
        e("s_branch L_item")
        l4 = len(self.L)
        self.label("L_fin")
        if self.diag:
            e("s_waitcnt vmcnt(0)")
            self.stamp(8)
            e(f"s_memrealtime {s(98,2)}")
            e("s_waitcnt lgkmcnt(0)")
            e(f"s_mov_b32 {s(STAMP0+18)}, s96"); e(f"s_mov_b32 {s(STAMP0+19)}, s98")
            e("s_mov_b32 s20, s14"); e("s_mov_b32 s21, s15"); e("s_mov_b32 s22, 0x10000000"); e("s_mov_b32 s23, 0x20000")
            e("v_mov_b32 v0, 0")
            for i in range(20): e(f"v_writelane_b32 v0, {s(STAMP0+i)}, {i}")
            e(f"s_lshl_b32 s3, s2, 2"); e(f"s_add_u32 s3, s3, {s(sWAVE)}"); e("s_lshl_b32 s3, s3, 8")
            e("v_mbcnt_lo_u32_b32 v1, -1, 0"); e("v_mbcnt_hi_u32_b32 v1, -1, v1"); e("v_lshlrev_b32 v1, 2, v1")
            e("buffer_store_dword v0, v1, s[20:23], s3 offen")
        self.label("L_end")
        e("s_endpgm")
        L = self.L
        errs = hazcheck.check(L[:l2] + L[l0:l1] + L[l2:l4] + L[i0:l1], "path")
        return errs
    def text(self):
        hdr = open("standalone__gqa_softmax__near_ridge.s.ref").read().split("; Override")[0]
        out = hdr + f"; @launch grid=(256,1,1) block=(256,1,1) lds={LDS_TOTAL}\n"
        out += f'.amdgcn_target "amdgcn-amd-amdhsa--gfx950"\n.text\n.globl {KN}\n.p2align 8\n.type {KN},@function\n{KN}:\n'
        out += "\n".join(self.L) + "\n"
        out += f""".section .rodata,"a"
.p2align 6
.amdhsa_kernel {KN}
  .amdhsa_next_free_vgpr 512
  .amdhsa_next_free_sgpr 102
  .amdhsa_accum_offset 256
  .amdhsa_group_segment_fixed_size 0
  .amdhsa_kernarg_size 48
  .amdhsa_user_sgpr_count 2
  .amdhsa_user_sgpr_kernarg_segment_ptr 1
  .amdhsa_system_sgpr_workgroup_id_x 1
.end_amdhsa_kernel
"""
        return out

if __name__ == "__main__":
    import argparse
    ap = argparse.ArgumentParser()
    ap.add_argument("-o", default="k.s"); ap.add_argument("--msum", default=""); ap.add_argument("--diag", action="store_true")
    A = ap.parse_args()
    g = Gen(msum=[int(c) for c in A.msum], diag=A.diag)
    errs = g.build()
    for x in errs[:20]: print(x)
    print("hazard errors:", len(errs))
    open(A.o, "w").write(g.text())
```

```python
import sys, struct, math
import hazcheck

KN = "standalone__gqa_softmax__near_ridge_kernel"
HEAD_BYTES = 736 * 256
TENSOR_BYTES = 256 * HEAD_BYTES
OOB = 0x7F000000
NT = 23

O_ = 0; S_ = 192; P_ = 208; NEGM = 216; L_ = 240
KA = 246; VA = 248; DMAOFF = 252; OST = 253; T0 = 254; T1 = 255
QA = 0; KF = 96; VF = 160; ONES = 224; LACC = 228
SRD_K = 16; SRD_V = 20; SRD_Q = 24; SRD_O = 28
sWAVE = 32; sKV = 33; sPOS = 34; sNEXTKV = 35; sQOFF = 36; sQM0 = 37; sW1K = 38; sCNT = 39
sSCALE = 40; sOROW = 41; sNHEADOFF = 42; sNROW = 43; sMORE = 44; sTMP = 45
sBAD = 46
sTHR = 48; sQBASE = 49; sCUR = 50; sFLAGS = 51; sMODE = 52; sHEADOFF = 53; sROW = 54; sT2 = 55
sH0 = 56; sR0 = 57; sH1 = 58; sR1 = 59; sDONE = 60; sT3 = 61
STAMP0 = 64
LDS_Q = 65536
LDS_TOTAL = 163840

def v(b, n=1): return f"v{b}" if n == 1 else f"v[{b}:{b+n-1}]"
def a(b, n=1): return f"a{b}" if n == 1 else f"a[{b}:{b+n-1}]"
def s(b, n=1): return f"s{b}" if n == 1 else f"s[{b}:{b+n-1}]"
def f32bits(x): return struct.unpack("<I", struct.pack("<f", x))[0]

class Gen:
    def __init__(self, msum=(), diag=False, opt=None):
        self.L = []
        self.msum = set(msum)
        self.diag = diag
        self.nstamp = 0
        self.opt = opt or {}
        self.xnames = []
    def pol(self, k):
        x = self.opt.get('p' + k, 0)
        return (" sc0" if x & 1 else "") + (" sc1" if x & 2 else "") + (" nt" if x & 4 else "")
    def e(self, t): self.L.append("  " + t)
    def label(self, t): self.L.append(t + ":")
    def stamp(self, idx):
        if self.diag:
            self.e(f"s_memtime {s(STAMP0 + 2*idx, 2)}")
    def xstamp(self, name):
        if self.diag and self.opt.get('fine'):
            n = 20 + self.nstamp; self.nstamp += 1
            self.xnames.append(name)
            self.e("s_memtime s[100:101]"); self.e("s_waitcnt lgkmcnt(0)")
            self.e(f"v_accvgpr_read_b32 {v(T0)}, a255"); self.e("s_nop 1")
            self.e(f"v_writelane_b32 {v(T0)}, s100, {n}"); self.e("s_nop 1")
            self.e(f"v_accvgpr_write_b32 a255, {v(T0)}")
    def mf_qk(self, qb, kvb, ks, par, sbuf, cinit='negm', dst=None):
        d = (S_ + 8 * sbuf + 4 * kvb) if dst is None else dst
        if ks == 0: c = v(NEGM + 4 * qb, 4) if cinit == 'negm' else "0"
        else: c = v(d, 4)
        return f"v_mfma_f32_16x16x32_bf16 {v(d,4)}, {a(KF + 32*par + 16*kvb + 4*ks, 4)}, {a(QA + 16*qb + 4*ks, 4)}, {c}"
    def mf_pv(self, qb, db, par, zero=False, dummy=False):
        d = O_ + 32 * qb + 4 * db
        pb = P_ + 4 * (qb & 1)
        c = "0" if zero else v(d, 4)
        aop = v(pb, 4) if dummy else a(VF + 32 * par + 4 * db, 4)
        return f"v_mfma_f32_16x16x32_bf16 {v(d,4)}, {aop}, {v(pb,4)}, {c}"
    def mf_sum(self, qb, zero=False):
        d = LACC + 4 * qb
        pb = P_ + 4 * (qb & 1)
        return f"v_mfma_f32_16x16x32_bf16 {a(d,4)}, {a(ONES,4)}, {v(pb,4)}, {'0' if zero else a(d,4)}"
    def rd_k(self, slot, par, kvb, ks):
        off = slot * 16384 + (ks >> 1) * 4096 + kvb * 2048
        return f"ds_read_b128 {a(KF + 32*par + 16*kvb + 4*ks, 4)}, {v(KA + (ks & 1))} offset:{off}"
    def rd_v(self, slot, par, db, jh):
        off = slot * 16384 + 8192 + (db >> 2) * 4096 + jh * 2048
        return f"ds_read_b64_tr_b16 {a(VF + 32*par + 4*db + 2*jh, 2)}, {v(VA + (db & 3))} offset:{off}"
    def dma_kv(self, slot, isv, h):
        base = slot * 16384 + isv * 8192 + h * (4096 - 128)
        srd = SRD_V if isv else SRD_K
        off = " offset:128" if h else ""
        return (f"s_add_u32 m0, {s(sW1K)}, {base}",
                f"buffer_load_dwordx4 {v(DMAOFF)}, {s(srd,4)}, {s(sKV)} offen{off}{self.pol('kv')} lds")
    def dma_q(self, h):
        off = " offset:128" if h else ""
        m0 = f"s_add_u32 m0, {s(sQM0)}, {12288 - 128}" if h else f"s_mov_b32 m0, {s(sQM0)}"
        return (m0, f"buffer_load_dwordx4 {v(DMAOFF)}, {s(SRD_Q,4)}, {s(sQOFF)} offen{off}{self.pol('q')} lds")
    def q_adv(self):
        return [f"s_add_u32 {s(sQM0)}, {s(sQM0)}, 1024", f"s_add_u32 {s(sQOFF)}, {s(sQOFF)}, 2048"]
    def kv_adv(self):
        return [f"s_add_u32 {s(sPOS)}, {s(sPOS)}, 1",
                f"s_add_u32 {s(sKV)}, {s(sKV)}, 8192",
                f"s_cmp_eq_u32 {s(sPOS)}, {NT}",
                f"s_cselect_b32 {s(sKV)}, {OOB}, {s(sKV)}",
                f"s_cmp_eq_u32 {s(sPOS)}, {NT+1}",
                f"s_cselect_b32 {s(sKV)}, {s(sNEXTKV)}, {s(sKV)}"]
    def iteration(self, ph, first=False, last=False, vm_end=None, tail_salu=(), nq=1):
        par = ph & 1; rslot = (ph + 1) & 3; wslot = ph & 3
        N = 96
        mf = [None] * N; sal = [[] for _ in range(N)]; vec = [[] for _ in range(N)]
        bonus = {}
        for p in range(6):
            for kvb in range(2):
                for ks in range(4):
                    mf[16 * p + 4 * kvb + ks] = self.mf_qk(p, kvb, ks, par, p & 1)
            qb = (p - 1) % 6
            vpar = par if p > 0 else par ^ 1
            for db in range(8):
                mf[16 * p + 8 + db] = self.mf_pv(qb, db, vpar, zero=first, dummy=(first and p == 0))
            if qb in self.msum:
                bonus[16 * p + 15] = [self.mf_sum(qb, zero=first), [], []]
        for p in range(-1, 6):
            qb = p % 6
            if p == -1 and first: continue
            for e_ in range(8):
                g = 16 * p + 7 + 2 * e_
                r = S_ + 8 * (qb & 1) + e_
                if 0 <= g < N: vec[g].append(f"v_exp_f32 {v(r)}, {v(r)}")
                g += 1
                if 0 <= g < N:
                    if e_ & 1: vec[g].append(f"v_cvt_pk_bf16_f32 {v(P_ + 4*(qb&1) + e_//2)}, {v(r-1)}, {v(r)}")
                    if qb not in self.msum:
                        vec[g].append(f"v_add_f32 {v(L_+qb)}, {v(r)}, {v(L_+qb)}")
        if not last:
            rds = [self.rd_k(rslot, par ^ 1, kvb, ks) for kvb in range(2) for ks in range(4)]
            rds += [self.rd_v(rslot, par ^ 1, db, jh) for db in range(8) for jh in range(2)]
            pos = [4 * i for i in range(24)]
            for i, r in enumerate(rds):
                g = pos[i]
                if g >= 88: g -= 8
                vec[g].insert(0, r)
            for g in (80, 84):
                mv = [x for x in vec[g] if x.startswith("v_add")]
                for x in mv:
                    vec[g].remove(x); vec[g + 8].append(x)
        dm = []
        if not last:
            for i in range(nq):
                h = (ph + i) & 1 if not first else i & 1
                dm.append((self.dma_q(h), self.q_adv() if h else []))
        for isv in range(2):
            for h in range(2):
                dm.append((self.dma_kv(wslot, isv, h), []))
        dm[-1] = (dm[-1][0], self.kv_adv())
        cand = []
        for g in range(2, N - 12):
            if len(vec[g]) == 0: cand.append((0, g, None))
            if g in bonus: cand.append((0, g, 'b'))
        for g in range(2, N - 12, 2):
            if len(vec[g]) == 1 and not vec[g][0].startswith(("v_exp", "ds_")): cand.append((1, g, None))
        dflt = [6 + 12 * i for i in range(7)]
        for g in dflt: cand.append((2, g, None))
        cand.sort(key=lambda x: x[0])
        chosen = []
        for c in cand:
            if len(chosen) == len(dm): break
            if all(abs(c[1] - o[1]) >= 3 for o in chosen): chosen.append(c)
        chosen.sort(key=lambda x: x[1])
        assert len(chosen) == len(dm)
        post = []
        for (c, ((m0, d), adv)) in zip(chosen, dm):
            g = c[1]
            if c[2] == 'b':
                sal[g].append(m0); bonus[g][2].append(d)
            else:
                sal[g - 1].append(m0); vec[g].insert(0, d)
            post.append((g + 1, adv))
        for g, adv in post:
            for x in adv:
                while sal[g]: g += 1
                sal[g].append(x); g += 1
        g = N - 8
        for x in tail_salu:
            while sal[g]: g += 1
            sal[g].append(x); g += 1
        if vm_end is not None:
            assert not sal[N - 2] and not sal[N - 1]
            sal[N - 2].append(f"s_waitcnt vmcnt({vm_end}) lgkmcnt(0)")
            sal[N - 1].append("s_barrier")
        for g in range(N):
            self.e(mf[g])
            for x in sal[g]: self.e(x)
            for x in vec[g]: self.e(x)
            if g in bonus:
                self.e(bonus[g][0])
                for x in bonus[g][1] + bonus[g][2]: self.e(x)
    def drain(self, par):
        qb = 5
        for e_ in range(5, 8):
            r = S_ + 8 + e_
            self.e(f"v_exp_f32 {v(r)}, {v(r)}")
        self.e("s_nop 0")
        for e_ in (5, 7):
            r = S_ + 8 + e_
            self.e(f"v_cvt_pk_bf16_f32 {v(P_ + 4 + e_//2)}, {v(r-1)}, {v(r)}")
        if qb not in self.msum:
            for e_ in range(4, 8):
                self.e(f"v_add_f32 {v(L_+qb)}, {v(S_+8+e_)}, {v(L_+qb)}")
        else:
            self.e("s_nop 1")
        for db in range(8): self.e(self.mf_pv(qb, db, par))
        if qb in self.msum: self.e(self.mf_sum(qb))
    def xsum(self, r, op="v_add_f32"):
        for sw in ("v_permlane16_swap_b32", "v_permlane32_swap_b32"):
            self.e(f"v_mov_b32 {v(T0)}, {v(r)}")
            self.e("s_nop 1")
            self.e(f"{sw} {v(r)}, {v(T0)}")
            self.e(f"{op} {v(r)}, {v(r)}, {v(T0)}")
    def epilogue(self):
        for qb in range(6):
            l = L_ + qb
            if qb == 5: self.e("s_nop 7")
            if qb in self.msum:
                self.e(f"v_accvgpr_read_b32 {v(l)}, {a(LACC + 4*qb)}")
            else:
                self.xsum(l)
            self.e(f"v_cmp_nle_f32 vcc, {v(l)}, {v(T1)}")
            self.e(f"v_rcp_f32 {v(l)}, {v(l)}")
            self.e(f"s_or_b64 {s(sBAD,2)}, {s(sBAD,2)}, vcc")
            self.e(f"s_add_u32 {s(sTMP)}, {s(sOROW)}, {qb * 4096}")
            o = O_ + 32 * qb
            self.xstamp(f"e{qb}")
            for t in range(4):
                for i in range(8): self.e(f"v_mul_f32 {v(o+8*t+i)}, {v(l)}, {v(o+8*t+i)}")
                for i in range(4): self.e(f"v_cvt_pk_bf16_f32 {v(o+8*t+i)}, {v(o+8*t+2*i)}, {v(o+8*t+2*i+1)}")
                self.e("s_nop 1")
                self.e(f"v_permlane16_swap_b32 {v(o+8*t)}, {v(o+8*t+2)}")
                self.e(f"v_permlane16_swap_b32 {v(o+8*t+1)}, {v(o+8*t+3)}")
                self.e(f"buffer_store_dwordx4 {v(o+8*t,4)}, {v(OST)}, {s(SRD_O,4)}, {s(sTMP)} offen offset:{64*t}{self.pol('o')}")
    def load_q(self, waits):
        A0 = S_; A1 = S_ + 1
        self.e(f"v_add_u32 {v(A0)}, {s(sQBASE)}, {v(KA)}")
        self.e(f"v_add_u32 {v(A1)}, {s(sQBASE)}, {v(KA+1)}")
        for qb in range(6):
            if waits[qb] is not None: self.e(f"s_waitcnt vmcnt({waits[qb]})")
            self.xstamp(f"q{qb}")
            t = O_ + 32 * qb + 8
            t = O_ + 32 * qb
            for ks in range(4):
                self.e(f"ds_read_b128 {v(t+4*ks,4)}, {v(A0 + (ks&1))} offset:{(ks>>1)*12288 + qb*2048}")
            self.e("s_waitcnt lgkmcnt(0)")
            for i in range(16):
                x = t + i; y = t + 16 + (i & 1)
                self.e(f"v_lshlrev_b32 {v(y)}, 16, {v(x)}")
                self.e(f"v_and_b32 {v(x)}, 0xffff0000, {v(x)}")
                self.e(f"v_mul_f32 {v(y)}, {s(sSCALE)}, {v(y)}")
                self.e(f"v_mul_f32 {v(x)}, {s(sSCALE)}, {v(x)}")
                self.e(f"v_cvt_pk_bf16_f32 {v(x)}, {v(y)}, {v(x)}")
                self.e(f"v_accvgpr_write_b32 {a(QA + 16*qb + i)}, {v(x)}")
    def read_tile0(self):
        for kvb in range(2):
            for ks in range(4): self.e(self.rd_k(0, 0, kvb, ks))
        for db in range(8):
            for jh in range(2): self.e(self.rd_v(0, 0, db, jh))
            if db == 3: self.e("s_waitcnt lgkmcnt(8)")
    def first_max(self):
        for qb in range(6):
            for ks in range(4): self.e(self.mf_qk(qb, 0, ks, 0, 0, cinit='zero', dst=O_ + 4 * qb))
        self.e("s_nop 7")
        for qb in range(6):
            t = O_ + 4 * qb
            self.e(f"v_max3_f32 {v(t)}, {v(t)}, {v(t+1)}, {v(t+2)}")
            self.e(f"v_max_f32 {v(t)}, {v(t)}, {v(t+3)}")
            self.xsum(t, "v_max_f32")
            for i in range(4): self.e(f"v_sub_f32 {v(NEGM+4*qb+i)}, 0, {v(t)}")
    def init_item(self):
        for qb in range(6): self.e(f"v_mov_b32 {v(L_+qb)}, 0")
        for i in range(4): self.e(f"v_mov_b32 {v(P_+4+i)}, 0")
    def set_srd_base(self, srd, ptr, off):
        self.e(f"s_add_u32 {s(srd)}, {s(ptr)}, {s(off)}")
        self.e(f"s_addc_u32 {s(srd+1)}, {s(ptr+1)}, 0")
    def setup_qdma(self, hoff, row):
        self.set_srd_base(SRD_Q, 4, hoff)
        self.e(f"s_mul_i32 {s(sTMP)}, {s(sWAVE)}, 88")
        self.e(f"s_add_u32 {s(sTMP)}, {s(sTMP)}, {s(row)}")
        self.e(f"s_lshl_b32 {s(sQOFF)}, {s(sTMP)}, 8")
        self.e(f"s_mov_b32 {s(sQM0)}, {s(sQBASE)}")
    def setup_out(self):
        self.set_srd_base(SRD_O, 10, sHEADOFF)
        self.e(f"s_mul_i32 {s(sTMP)}, {s(sWAVE)}, 96")
        self.e(f"s_add_u32 {s(sTMP)}, {s(sTMP)}, {s(sROW)}")
        self.e(f"s_lshl_b32 {s(sOROW)}, {s(sTMP)}, 8")
    def emit_dma(self, pair):
        self.e(pair[0]); self.e("s_nop 0"); self.e(pair[1])
    def dma_tile(self, slot, which=(0, 1), adv=True):
        for isv in which:
            for h in range(2): self.emit_dma(self.dma_kv(slot, isv, h))
        if adv:
            for x in self.kv_adv(): self.e(x)

    def build(self):
        e = self.e
        e("s_cmp_ge_u32 s2, 256"); e("s_cbranch_scc1 L_end")
        e("s_load_dwordx4 s[4:7], s[0:1], 0"); e("s_load_dwordx4 s[8:11], s[0:1], 16"); e("s_load_dwordx4 s[12:15], s[0:1], 32")
        if self.diag: e(f"s_memrealtime {s(96,2)}")
        self.stamp(0)
        e("v_lshrrev_b32 v1, 6, v0"); e("v_and_b32 v2, 63, v0")
        e(f"v_readfirstlane_b32 {s(sWAVE)}, v1")
        e("v_and_b32 v3, 15, v2")
        e("v_lshrrev_b32 v4, 4, v2")
        e("v_and_b32 v5, 6, v3")
        e("v_xor_b32 v6, v4, v5")
        e("v_lshlrev_b32 v6, 4, v6")
        e(f"v_lshl_add_u32 {v(KA)}, v3, 7, v6")
        e(f"v_xor_b32 {v(KA+1)}, 64, {v(KA)}")
        e("v_lshrrev_b32 v5, 2, v2")
        e("v_and_b32 v6, 6, v5")
        e("v_lshlrev_b32 v6, 4, v6")
        e("v_and_b32 v7, 3, v2")
        e("v_lshlrev_b32 v7, 3, v7")
        e("v_lshl_add_u32 v7, v5, 7, v7")
        e(f"v_add_u32 {v(VA)}, v6, v7")
        for i in range(1, 4): e(f"v_xor_b32 {v(VA+i)}, {32*i}, {v(VA)}")
        e("v_lshrrev_b32 v5, 3, v2")
        e("v_and_b32 v6, 6, v5")
        e("v_and_b32 v7, 7, v2")
        e("v_xor_b32 v6, v6, v7")
        e("v_lshlrev_b32 v6, 4, v6")
        e("v_lshrrev_b32 v5, 3, v0")
        e(f"v_lshl_add_u32 {v(DMAOFF)}, v5, 8, v6")
        e("v_and_b32 v5, 1, v4"); e("v_lshlrev_b32 v5, 5, v5")
        e("v_lshrrev_b32 v6, 1, v4"); e("v_lshl_add_u32 v5, v6, 4, v5")
        e(f"v_lshl_add_u32 {v(OST)}, v3, 8, v5")
        e(f"v_mov_b32 {v(T1)}, {hex(f32bits(2.0**64))}")
        e("v_mov_b32 v5, 0x3f803f80")
        for i in range(4): e(f"v_accvgpr_write_b32 {a(ONES+i)}, v5")
        e(f"s_lshl_b32 {s(sW1K)}, {s(sWAVE)}, 10")
        e(f"s_mul_i32 {s(sQBASE)}, {s(sWAVE)}, 24576")
        e(f"s_add_u32 {s(sQBASE)}, {s(sQBASE)}, {LDS_Q}")
        e(f"s_mov_b32 {s(sSCALE)}, {hex(f32bits(math.log2(math.e) / math.sqrt(128.0)))}")
        e(f"s_and_b32 {s(sTMP)}, s2, 7"); e(f"s_lshl_b32 {s(sTMP)}, {s(sTMP)}, 5")
        e(f"s_lshr_b32 {s(sT2)}, s2, 4"); e(f"s_add_u32 {s(sTMP)}, {s(sTMP)}, {s(sT2)}")
        e(f"s_mul_i32 {s(sH0)}, {s(sTMP)}, {HEAD_BYTES}")
        e(f"s_add_u32 {s(sH1)}, {s(sH0)}, {16 * HEAD_BYTES}")
        e(f"s_bfe_u32 {s(sT2)}, s2, 0x10003")
        e(f"s_mul_i32 {s(sR0)}, {s(sT2)}, 384")
        e(f"s_sub_u32 {s(sR1)}, 384, {s(sR0)}")
        e(f"s_mov_b64 {s(sBAD,2)}, 0"); e(f"s_mov_b32 {s(sFLAGS)}, 0"); e(f"s_mov_b32 {s(sCUR)}, 0")
        e("s_waitcnt lgkmcnt(0)")
        for srd, ptr in ((SRD_K, 6), (SRD_V, 8)):
            e(f"s_mov_b32 {s(srd)}, {s(ptr)}"); e(f"s_mov_b32 {s(srd+1)}, {s(ptr+1)}")
            e(f"s_mov_b32 {s(srd+2)}, {TENSOR_BYTES}"); e(f"s_mov_b32 {s(srd+3)}, 0x20000")
        for srd in (SRD_Q, SRD_O):
            e(f"s_mov_b32 {s(srd+2)}, {HEAD_BYTES}"); e(f"s_mov_b32 {s(srd+3)}, 0x20000")
        e(f"s_mov_b32 {s(sHEADOFF)}, {s(sH0)}"); e(f"s_mov_b32 {s(sROW)}, {s(sR0)}")
        e(f"s_mov_b32 {s(sNEXTKV)}, {s(sH1)}"); e(f"s_mov_b32 {s(sMORE)}, 1")
        self.setup_qdma(sHEADOFF, sROW)
        self.setup_out()
        e(f"s_mov_b32 {s(sKV)}, {s(sHEADOFF)}"); e(f"s_mov_b32 {s(sPOS)}, 0")
        self.xstamp("setup")
        self.dma_tile(0, which=(0,), adv=False)
        for R in range(12):
            for h in range(2): self.emit_dma(self.dma_q(h))
            for x in self.q_adv(): e(x)
        self.dma_tile(0, which=(1,))
        self.dma_tile(1); self.dma_tile(2); self.dma_tile(3)
        self.xstamp("issued")
        e("s_waitcnt vmcnt(38)") if self.opt.get('fine') else None
        self.xstamp("k0")
        self.load_q([(5 - qb) * 4 + 14 for qb in range(6)])
        self.stamp(1)
        e("s_waitcnt vmcnt(12)"); e("s_barrier")
        self.read_tile0()
        self.setup_qdma(sH1, sR1)
        self.first_max()
        self.init_item()
        e("s_waitcnt vmcnt(8) lgkmcnt(0)"); e("s_barrier")
        self.label("L_item")
        self.stamp(2)
        i0 = len(self.L)
        self.iteration(0, first=True, vm_end=11, nq=3, tail_salu=[f"s_mov_b32 {s(sCNT)}, 6"])
        self.L.append(".p2align 6") if False else None
        self.label("L_loop")
        l0 = len(self.L)
        self.iteration(1, vm_end=10, tail_salu=[f"s_sub_u32 {s(sCNT)}, {s(sCNT)}, 1", f"s_cmp_eq_u32 {s(sCNT)}, 0"])
        e("s_cbranch_scc1 L_last")
        l1 = len(self.L)
        self.iteration(2, vm_end=10)
        self.iteration(3, vm_end=10)
        self.iteration(0, vm_end=10)
        e("s_branch L_loop")
        l2 = len(self.L)
        self.label("L_last")
        self.iteration(2, last=True)
        self.drain(0)
        self.stamp(3)
        self.dma_tile(3)
        self.epilogue()
        l3 = len(self.L)
        self.stamp(4)
        e(f"s_cmp_lg_u64 {s(sBAD,2)}, 0")
        e(f"s_cselect_b32 {s(sTMP)}, 1, 0")
        e(f"s_lshl_b32 {s(sTMP)}, {s(sTMP)}, {s(sCUR)}")
        e(f"s_or_b32 {s(sFLAGS)}, {s(sFLAGS)}, {s(sTMP)}")
        e(f"s_mov_b64 {s(sBAD,2)}, 0")
        e(f"s_cmp_eq_u32 {s(sMORE)}, 0"); e("s_cbranch_scc1 L_fin")
        e(f"s_mov_b32 {s(sMORE)}, 0"); e(f"s_mov_b32 {s(sCUR)}, 1")
        e(f"s_mov_b32 {s(sHEADOFF)}, {s(sH1)}"); e(f"s_mov_b32 {s(sROW)}, {s(sR1)}")
        e(f"s_mov_b32 {s(sNEXTKV)}, {OOB}"); e(f"s_mov_b32 {s(sPOS)}, 4")
        self.setup_out()
        self.load_q([36, None, None, None, None, None])
        e("s_barrier")
        self.read_tile0()
        e(f"s_mov_b32 {s(SRD_Q+2)}, 0")
        e(f"s_mov_b32 {s(sQM0)}, {s(sQBASE)}")
        self.first_max()
        self.init_item()
        e("s_waitcnt vmcnt(32) lgkmcnt(0)"); e("s_barrier")
        if self.diag:
            e("s_waitcnt lgkmcnt(0)")
            for i in range(4, 10): e(f"s_mov_b32 {s(STAMP0 + 6 + i)}, {s(STAMP0 + i)}")
        e("s_branch L_item")
        l4 = len(self.L)
        self.label("L_fin")
        if self.diag:
            e("s_waitcnt vmcnt(0)")
            self.stamp(8)
            e(f"s_memrealtime {s(98,2)}")
            e("s_waitcnt lgkmcnt(0)")
            e(f"s_mov_b32 {s(STAMP0+18)}, s96"); e(f"s_mov_b32 {s(STAMP0+19)}, s98")
            e("s_mov_b32 s20, s14"); e("s_mov_b32 s21, s15"); e("s_mov_b32 s22, 0x10000000"); e("s_mov_b32 s23, 0x20000")
            e("v_accvgpr_read_b32 v0, a255"); e("s_nop 1")
            for i in range(20): e(f"v_writelane_b32 v0, {s(STAMP0+i)}, {i}")
            e(f"s_lshl_b32 s3, s2, 2"); e(f"s_add_u32 s3, s3, {s(sWAVE)}"); e("s_lshl_b32 s3, s3, 8")
            e("v_mbcnt_lo_u32_b32 v1, -1, 0"); e("v_mbcnt_hi_u32_b32 v1, -1, v1"); e("v_lshlrev_b32 v1, 2, v1")
            e("buffer_store_dword v0, v1, s[20:23], s3 offen")
        self.label("L_end")
        e("s_endpgm")
        L = self.L
        errs = hazcheck.check(L[:l2] + L[l0:l1] + L[l2:l4] + L[i0:l1], "path")
        return errs
    def text(self):
        hdr = open("standalone__gqa_softmax__near_ridge.s.ref").read().split("; Override")[0]
        out = hdr + f"; @launch grid=(256,1,1) block=(256,1,1) lds={LDS_TOTAL}\n"
        out += f'.amdgcn_target "amdgcn-amd-amdhsa--gfx950"\n.text\n.globl {KN}\n.p2align 8\n.type {KN},@function\n{KN}:\n'
        out += "\n".join(self.L) + "\n"
        out += f""".section .rodata,"a"
.p2align 6
.amdhsa_kernel {KN}
  .amdhsa_next_free_vgpr 512
  .amdhsa_next_free_sgpr 102
  .amdhsa_accum_offset 256
  .amdhsa_group_segment_fixed_size 0
  .amdhsa_kernarg_size 48
  .amdhsa_user_sgpr_count 2
  .amdhsa_user_sgpr_kernarg_segment_ptr 1
  .amdhsa_system_sgpr_workgroup_id_x 1
.end_amdhsa_kernel
"""
        return out

if __name__ == "__main__":
    import argparse
    ap = argparse.ArgumentParser()
    ap.add_argument("-o", default="k.s"); ap.add_argument("--msum", default=""); ap.add_argument("--diag", action="store_true"); ap.add_argument("--opt", default="")
    A = ap.parse_args()
    opt = {}
    for kv in A.opt.split(","):
        if kv:
            k_, _, v_ = kv.partition("=")
            opt[k_] = int(v_) if v_ else 1
    g = Gen(msum=[int(c) for c in A.msum], diag=A.diag, opt=opt)
    errs = g.build()
    for x in errs[:20]: print(x)
    print("hazard errors:", len(errs))
    open(A.o, "w").write(g.text() + ("; XNAMES " + " ".join(g.xnames) + "\n" if g.xnames else ""))
```

```python
import sys, struct, math
import hazcheck

KN = "standalone__gqa_softmax__near_ridge_kernel"
HEAD_BYTES = 736 * 256
TENSOR_BYTES = 256 * HEAD_BYTES
OOB = 0x7F000000
NT = 23

O_ = 0; S_ = 192; P_ = 208; NEGM = 216; L_ = 240
KA = 246; VA = 248; DMAOFF = 252; OST = 253; T0 = 254; T1 = 255
QA = 0; KF = 96; VF = 160; ONES = 224; LACC = 228
SRD_K = 16; SRD_V = 20; SRD_Q = 24; SRD_O = 28
sWAVE = 32; sKV = 33; sPOS = 34; sNEXTKV = 35; sQOFF = 36; sQM0 = 37; sW1K = 38; sCNT = 39
sSCALE = 40; sOROW = 41; sNHEADOFF = 42; sNROW = 43; sMORE = 44; sTMP = 45
sBAD = 46
sTHR = 48; sQBASE = 49; sCUR = 50; sFLAGS = 51; sMODE = 52; sHEADOFF = 53; sROW = 54; sT2 = 55
sH0 = 56; sR0 = 57; sH1 = 58; sR1 = 59; sDONE = 60; sT3 = 61
STAMP0 = 64
LDS_Q = 65536
LDS_TOTAL = 163840

def v(b, n=1): return f"v{b}" if n == 1 else f"v[{b}:{b+n-1}]"
def a(b, n=1): return f"a{b}" if n == 1 else f"a[{b}:{b+n-1}]"
def s(b, n=1): return f"s{b}" if n == 1 else f"s[{b}:{b+n-1}]"
def f32bits(x): return struct.unpack("<I", struct.pack("<f", x))[0]

class Gen:
    def __init__(self, msum=(), diag=False, opt=None):
        self.L = []
        self.msum = set(msum)
        self.diag = diag
        self.nstamp = 0
        self.opt = opt or {}
        self.xnames = []
    def pol(self, k):
        x = self.opt.get('p' + k, 0)
        return (" sc0" if x & 1 else "") + (" sc1" if x & 2 else "") + (" nt" if x & 4 else "")
    def e(self, t): self.L.append("  " + t)
    def label(self, t): self.L.append(t + ":")
    def stamp(self, idx):
        if self.diag:
            self.e(f"s_memtime {s(STAMP0 + 2*idx, 2)}")
    def xstamp(self, name):
        if self.diag and self.opt.get('fine'):
            n = 20 + self.nstamp; self.nstamp += 1
            self.xnames.append(name)
            self.e("s_memtime s[100:101]"); self.e("s_waitcnt lgkmcnt(0)")
            self.e(f"v_accvgpr_read_b32 {v(T0)}, a255"); self.e("s_nop 1")
            self.e(f"v_writelane_b32 {v(T0)}, s100, {n}"); self.e("s_nop 1")
            self.e(f"v_accvgpr_write_b32 a255, {v(T0)}")
    def mf_qk(self, qb, kvb, ks, par, sbuf, cinit='negm', dst=None):
        d = (S_ + 8 * sbuf + 4 * kvb) if dst is None else dst
        if ks == 0: c = v(NEGM + 4 * qb, 4) if cinit == 'negm' else "0"
        else: c = v(d, 4)
        return f"v_mfma_f32_16x16x32_bf16 {v(d,4)}, {a(KF + 32*par + 16*kvb + 4*ks, 4)}, {a(QA + 16*qb + 4*ks, 4)}, {c}"
    def mf_pv(self, qb, db, par, zero=False, dummy=False):
        d = O_ + 32 * qb + 4 * db
        pb = P_ + 4 * (qb & 1)
        c = "0" if zero else v(d, 4)
        aop = v(pb, 4) if dummy else a(VF + 32 * par + 4 * db, 4)
        return f"v_mfma_f32_16x16x32_bf16 {v(d,4)}, {aop}, {v(pb,4)}, {c}"
    def mf_sum(self, qb, zero=False):
        d = LACC + 4 * qb
        pb = P_ + 4 * (qb & 1)
        return f"v_mfma_f32_16x16x32_bf16 {a(d,4)}, {a(ONES,4)}, {v(pb,4)}, {'0' if zero else a(d,4)}"
    def rd_k(self, slot, par, kvb, ks):
        off = slot * 16384 + (ks >> 1) * 4096 + kvb * 2048
        return f"ds_read_b128 {a(KF + 32*par + 16*kvb + 4*ks, 4)}, {v(KA + (ks & 1))} offset:{off}"
    def rd_v(self, slot, par, db, jh):
        off = slot * 16384 + 8192 + (db >> 2) * 4096 + jh * 2048
        return f"ds_read_b64_tr_b16 {a(VF + 32*par + 4*db + 2*jh, 2)}, {v(VA + (db & 3))} offset:{off}"
    def dma_kv(self, slot, isv, h):
        base = slot * 16384 + isv * 8192 + h * (4096 - 128)
        srd = SRD_V if isv else SRD_K
        off = " offset:128" if h else ""
        return (f"s_add_u32 m0, {s(sW1K)}, {base}",
                f"buffer_load_dwordx4 {v(DMAOFF)}, {s(srd,4)}, {s(sKV)} offen{off}{self.pol('kv')} lds")
    def dma_q(self, h):
        off = " offset:128" if h else ""
        m0 = f"s_add_u32 m0, {s(sQM0)}, {12288 - 128}" if h else f"s_mov_b32 m0, {s(sQM0)}"
        return (m0, f"buffer_load_dwordx4 {v(DMAOFF)}, {s(SRD_Q,4)}, {s(sQOFF)} offen{off}{self.pol('q')} lds")
    def q_adv(self):
        return [f"s_add_u32 {s(sQM0)}, {s(sQM0)}, 1024", f"s_add_u32 {s(sQOFF)}, {s(sQOFF)}, 2048"]
    def kv_adv(self):
        return [f"s_add_u32 {s(sPOS)}, {s(sPOS)}, 1",
                f"s_add_u32 {s(sKV)}, {s(sKV)}, 8192",
                f"s_cmp_eq_u32 {s(sPOS)}, {NT}",
                f"s_cselect_b32 {s(sKV)}, {OOB}, {s(sKV)}",
                f"s_cmp_eq_u32 {s(sPOS)}, {NT+1}",
                f"s_cselect_b32 {s(sKV)}, {s(sNEXTKV)}, {s(sKV)}"]
    def iteration(self, ph, first=False, last=False, vm_end=None, tail_salu=(), nq=1):
        par = ph & 1; rslot = (ph + 1) & 3; wslot = ph & 3
        N = 96
        mf = [None] * N; sal = [[] for _ in range(N)]; vec = [[] for _ in range(N)]
        bonus = {}
        for p in range(6):
            for kvb in range(2):
                for ks in range(4):
                    mf[16 * p + 4 * kvb + ks] = self.mf_qk(p, kvb, ks, par, p & 1)
            qb = (p - 1) % 6
            vpar = par if p > 0 else par ^ 1
            for db in range(8):
                mf[16 * p + 8 + db] = self.mf_pv(qb, db, vpar, zero=first, dummy=(first and p == 0))
            if qb in self.msum:
                bonus[16 * p + 15] = [self.mf_sum(qb, zero=first), [], []]
        for p in range(-1, 6):
            qb = p % 6
            if p == -1 and first: continue
            for e_ in range(8):
                g = 16 * p + 7 + 2 * e_
                r = S_ + 8 * (qb & 1) + e_
                if 0 <= g < N: vec[g].append(f"v_exp_f32 {v(r)}, {v(r)}")
                g += 1
                if 0 <= g < N:
                    if e_ & 1: vec[g].append(f"v_cvt_pk_bf16_f32 {v(P_ + 4*(qb&1) + e_//2)}, {v(r-1)}, {v(r)}")
                    if qb not in self.msum:
                        vec[g].append(f"v_add_f32 {v(L_+qb)}, {v(r)}, {v(L_+qb)}")
        if not last:
            rds = [self.rd_k(rslot, par ^ 1, kvb, ks) for kvb in range(2) for ks in range(4)]
            rds += [self.rd_v(rslot, par ^ 1, db, jh) for db in range(8) for jh in range(2)]
            pos = [4 * i for i in range(24)]
            for i, r in enumerate(rds):
                g = pos[i]
                if g >= 88: g -= 8
                vec[g].insert(0, r)
            for g in (80, 84):
                mv = [x for x in vec[g] if x.startswith("v_add")]
                for x in mv:
                    vec[g].remove(x); vec[g + 8].append(x)
        dm = []
        if not last:
            for i in range(nq):
                h = (ph + i) & 1 if not first else i & 1
                dm.append((self.dma_q(h), self.q_adv() if h else []))
        for isv in range(2):
            for h in range(2):
                dm.append((self.dma_kv(wslot, isv, h), []))
        dm[-1] = (dm[-1][0], self.kv_adv())
        cand = []
        for g in range(2, N - 12):
            if len(vec[g]) == 0: cand.append((0, g, None))
            if g in bonus: cand.append((0, g, 'b'))
        for g in range(2, N - 12, 2):
            if len(vec[g]) == 1 and not vec[g][0].startswith(("v_exp", "ds_")): cand.append((1, g, None))
        dflt = [6 + 12 * i for i in range(7)]
        for g in dflt: cand.append((2, g, None))
        cand.sort(key=lambda x: x[0])
        chosen = []
        for c in cand:
            if len(chosen) == len(dm): break
            if all(abs(c[1] - o[1]) >= 3 for o in chosen): chosen.append(c)
        chosen.sort(key=lambda x: x[1])
        assert len(chosen) == len(dm)
        post = []
        for (c, ((m0, d), adv)) in zip(chosen, dm):
            g = c[1]
            if c[2] == 'b':
                sal[g].append(m0); bonus[g][2].append(d)
            else:
                sal[g - 1].append(m0); vec[g].insert(0, d)
            post.append((g + 1, adv))
        for g, adv in post:
            for x in adv:
                while sal[g]: g += 1
                sal[g].append(x); g += 1
        g = N - 8
        for x in tail_salu:
            while sal[g]: g += 1
            sal[g].append(x); g += 1
        if vm_end is not None:
            assert not sal[N - 2] and not sal[N - 1]
            sal[N - 2].append(f"s_waitcnt vmcnt({vm_end}) lgkmcnt(0)")
            sal[N - 1].append("s_barrier")
        for g in range(N):
            self.e(mf[g])
            for x in sal[g]: self.e(x)
            for x in vec[g]: self.e(x)
            if g in bonus:
                self.e(bonus[g][0])
                for x in bonus[g][1] + bonus[g][2]: self.e(x)
    def drain(self, par):
        qb = 5
        for e_ in range(5, 8):
            r = S_ + 8 + e_
            self.e(f"v_exp_f32 {v(r)}, {v(r)}")
        self.e("s_nop 0")
        for e_ in (5, 7):
            r = S_ + 8 + e_
            self.e(f"v_cvt_pk_bf16_f32 {v(P_ + 4 + e_//2)}, {v(r-1)}, {v(r)}")
        if qb not in self.msum:
            for e_ in range(4, 8):
                self.e(f"v_add_f32 {v(L_+qb)}, {v(S_+8+e_)}, {v(L_+qb)}")
        else:
            self.e("s_nop 1")
        for db in range(8): self.e(self.mf_pv(qb, db, par))
        if qb in self.msum: self.e(self.mf_sum(qb))
    def xsum(self, r, op="v_add_f32"):
        for sw in ("v_permlane16_swap_b32", "v_permlane32_swap_b32"):
            self.e(f"v_mov_b32 {v(T0)}, {v(r)}")
            self.e("s_nop 1")
            self.e(f"{sw} {v(r)}, {v(T0)}")
            self.e(f"{op} {v(r)}, {v(r)}, {v(T0)}")
    def epilogue(self):
        for qb in range(6):
            l = L_ + qb
            if qb == 5: self.e("s_nop 7")
            if qb in self.msum:
                self.e(f"v_accvgpr_read_b32 {v(l)}, {a(LACC + 4*qb)}")
            else:
                self.xsum(l)
            self.e(f"v_cmp_nle_f32 vcc, {v(l)}, {v(T1)}")
            self.e(f"v_rcp_f32 {v(l)}, {v(l)}")
            self.e(f"s_or_b64 {s(sBAD,2)}, {s(sBAD,2)}, vcc")
            self.e(f"s_add_u32 {s(sTMP)}, {s(sOROW)}, {qb * 4096}")
            o = O_ + 32 * qb
            self.xstamp(f"e{qb}")
            for t in range(4):
                for i in range(8): self.e(f"v_mul_f32 {v(o+8*t+i)}, {v(l)}, {v(o+8*t+i)}")
                for i in range(4): self.e(f"v_cvt_pk_bf16_f32 {v(o+8*t+i)}, {v(o+8*t+2*i)}, {v(o+8*t+2*i+1)}")
                self.e("s_nop 1")
                self.e(f"v_permlane16_swap_b32 {v(o+8*t)}, {v(o+8*t+2)}")
                self.e(f"v_permlane16_swap_b32 {v(o+8*t+1)}, {v(o+8*t+3)}")
                self.e(f"buffer_store_dwordx4 {v(o+8*t,4)}, {v(OST)}, {s(SRD_O,4)}, {s(sTMP)} offen offset:{64*t}{self.pol('o')}")
    def load_q(self, waits):
        A0 = S_; A1 = S_ + 1
        self.e(f"v_add_u32 {v(A0)}, {s(sQBASE)}, {v(KA)}")
        self.e(f"v_add_u32 {v(A1)}, {s(sQBASE)}, {v(KA+1)}")
        for qb in range(6):
            if waits[qb] is not None: self.e(f"s_waitcnt vmcnt({waits[qb]})")
            self.xstamp(f"q{qb}")
            t = O_ + 32 * qb + 8
            t = O_ + 32 * qb
            for ks in range(4):
                self.e(f"ds_read_b128 {v(t+4*ks,4)}, {v(A0 + (ks&1))} offset:{(ks>>1)*12288 + qb*2048}")
            self.e("s_waitcnt lgkmcnt(0)")
            for i in range(16):
                x = t + i; y = t + 16 + (i & 1)
                self.e(f"v_lshlrev_b32 {v(y)}, 16, {v(x)}")
                self.e(f"v_and_b32 {v(x)}, 0xffff0000, {v(x)}")
                self.e(f"v_mul_f32 {v(y)}, {s(sSCALE)}, {v(y)}")
                self.e(f"v_mul_f32 {v(x)}, {s(sSCALE)}, {v(x)}")
                self.e(f"v_cvt_pk_bf16_f32 {v(x)}, {v(y)}, {v(x)}")
                self.e(f"v_accvgpr_write_b32 {a(QA + 16*qb + i)}, {v(x)}")
    def read_tile0(self):
        for kvb in range(2):
            for ks in range(4): self.e(self.rd_k(0, 0, kvb, ks))
        for db in range(8):
            for jh in range(2): self.e(self.rd_v(0, 0, db, jh))
            if db == 3: self.e("s_waitcnt lgkmcnt(8)")
    def first_max(self):
        for qb in range(6):
            for ks in range(4): self.e(self.mf_qk(qb, 0, ks, 0, 0, cinit='zero', dst=O_ + 4 * qb))
        self.e("s_nop 7")
        for qb in range(6):
            t = O_ + 4 * qb
            self.e(f"v_max3_f32 {v(t)}, {v(t)}, {v(t+1)}, {v(t+2)}")
            self.e(f"v_max_f32 {v(t)}, {v(t)}, {v(t+3)}")
            self.xsum(t, "v_max_f32")
            for i in range(4): self.e(f"v_sub_f32 {v(NEGM+4*qb+i)}, 0, {v(t)}")
    def init_item(self):
        for qb in range(6): self.e(f"v_mov_b32 {v(L_+qb)}, 0")
        for i in range(4): self.e(f"v_mov_b32 {v(P_+4+i)}, 0")
    def set_srd_base(self, srd, ptr, off):
        self.e(f"s_add_u32 {s(srd)}, {s(ptr)}, {s(off)}")
        self.e(f"s_addc_u32 {s(srd+1)}, {s(ptr+1)}, 0")
    def setup_qdma(self, hoff, row):
        self.set_srd_base(SRD_Q, 4, hoff)
        self.e(f"s_mul_i32 {s(sTMP)}, {s(sWAVE)}, 88")
        self.e(f"s_add_u32 {s(sTMP)}, {s(sTMP)}, {s(row)}")
        self.e(f"s_lshl_b32 {s(sQOFF)}, {s(sTMP)}, 8")
        self.e(f"s_mov_b32 {s(sQM0)}, {s(sQBASE)}")
    def setup_out(self):
        self.set_srd_base(SRD_O, 10, sHEADOFF)
        self.e(f"s_mul_i32 {s(sTMP)}, {s(sWAVE)}, 96")
        self.e(f"s_add_u32 {s(sTMP)}, {s(sTMP)}, {s(sROW)}")
        self.e(f"s_lshl_b32 {s(sOROW)}, {s(sTMP)}, 8")
    def emit_dma(self, pair):
        self.e(pair[0]); self.e("s_nop 0"); self.e(pair[1])
    def dma_tile(self, slot, which=(0, 1), adv=True):
        for isv in which:
            for h in range(2): self.emit_dma(self.dma_kv(slot, isv, h))
        if adv:
            for x in self.kv_adv(): self.e(x)

    def build(self):
        e = self.e
        e("s_cmp_ge_u32 s2, 256"); e("s_cbranch_scc1 L_end")
        e("s_load_dwordx4 s[4:7], s[0:1], 0"); e("s_load_dwordx4 s[8:11], s[0:1], 16"); e("s_load_dwordx4 s[12:15], s[0:1], 32")
        if self.diag: e(f"s_memrealtime {s(96,2)}")
        self.stamp(0)
        e("v_lshrrev_b32 v1, 6, v0"); e("v_and_b32 v2, 63, v0")
        e(f"v_readfirstlane_b32 {s(sWAVE)}, v1")
        e("v_and_b32 v3, 15, v2")
        e("v_lshrrev_b32 v4, 4, v2")
        e("v_and_b32 v5, 6, v3")
        e("v_xor_b32 v6, v4, v5")
        e("v_lshlrev_b32 v6, 4, v6")
        e(f"v_lshl_add_u32 {v(KA)}, v3, 7, v6")
        e(f"v_xor_b32 {v(KA+1)}, 64, {v(KA)}")
        e("v_lshrrev_b32 v5, 2, v2")
        e("v_and_b32 v6, 6, v5")
        e("v_lshlrev_b32 v6, 4, v6")
        e("v_and_b32 v7, 3, v2")
        e("v_lshlrev_b32 v7, 3, v7")
        e("v_lshl_add_u32 v7, v5, 7, v7")
        e(f"v_add_u32 {v(VA)}, v6, v7")
        for i in range(1, 4): e(f"v_xor_b32 {v(VA+i)}, {32*i}, {v(VA)}")
        e("v_lshrrev_b32 v5, 3, v2")
        e("v_and_b32 v6, 6, v5")
        e("v_and_b32 v7, 7, v2")
        e("v_xor_b32 v6, v6, v7")
        e("v_lshlrev_b32 v6, 4, v6")
        e("v_lshrrev_b32 v5, 3, v0")
        e(f"v_lshl_add_u32 {v(DMAOFF)}, v5, 8, v6")
        e("v_and_b32 v5, 1, v4"); e("v_lshlrev_b32 v5, 5, v5")
        e("v_lshrrev_b32 v6, 1, v4"); e("v_lshl_add_u32 v5, v6, 4, v5")
        e(f"v_lshl_add_u32 {v(OST)}, v3, 8, v5")
        e(f"v_mov_b32 {v(T1)}, {hex(f32bits(2.0**64))}")
        e("v_mov_b32 v5, 0x3f803f80")
        for i in range(4): e(f"v_accvgpr_write_b32 {a(ONES+i)}, v5")
        e(f"s_lshl_b32 {s(sW1K)}, {s(sWAVE)}, 10")
        e(f"s_mul_i32 {s(sQBASE)}, {s(sWAVE)}, 24576")
        e(f"s_add_u32 {s(sQBASE)}, {s(sQBASE)}, {LDS_Q}")
        e(f"s_mov_b32 {s(sSCALE)}, {hex(f32bits(math.log2(math.e) / math.sqrt(128.0)))}")
        e(f"s_and_b32 {s(sTMP)}, s2, 7"); e(f"s_lshl_b32 {s(sTMP)}, {s(sTMP)}, 5")
        e(f"s_lshr_b32 {s(sT2)}, s2, 4"); e(f"s_add_u32 {s(sTMP)}, {s(sTMP)}, {s(sT2)}")
        e(f"s_mul_i32 {s(sH0)}, {s(sTMP)}, {HEAD_BYTES}")
        e(f"s_add_u32 {s(sH1)}, {s(sH0)}, {16 * HEAD_BYTES}")
        e(f"s_bfe_u32 {s(sT2)}, s2, 0x10003")
        e(f"s_mul_i32 {s(sR0)}, {s(sT2)}, 384")
        e(f"s_sub_u32 {s(sR1)}, 384, {s(sR0)}")
        e(f"s_mov_b64 {s(sBAD,2)}, 0"); e(f"s_mov_b32 {s(sFLAGS)}, 0"); e(f"s_mov_b32 {s(sCUR)}, 0")
        e("s_waitcnt lgkmcnt(0)")
        for srd, ptr in ((SRD_K, 6), (SRD_V, 8)):
            e(f"s_mov_b32 {s(srd)}, {s(ptr)}"); e(f"s_mov_b32 {s(srd+1)}, {s(ptr+1)}")
            e(f"s_mov_b32 {s(srd+2)}, {TENSOR_BYTES}"); e(f"s_mov_b32 {s(srd+3)}, 0x20000")
        for srd in (SRD_Q, SRD_O):
            e(f"s_mov_b32 {s(srd+2)}, {HEAD_BYTES}"); e(f"s_mov_b32 {s(srd+3)}, 0x20000")
        e(f"s_mov_b32 {s(sHEADOFF)}, {s(sH0)}"); e(f"s_mov_b32 {s(sROW)}, {s(sR0)}")
        e(f"s_mov_b32 {s(sNEXTKV)}, {s(sH1)}"); e(f"s_mov_b32 {s(sMORE)}, 1")
        self.setup_qdma(sHEADOFF, sROW)
        self.setup_out()
        e(f"s_mov_b32 {s(sKV)}, {s(sHEADOFF)}"); e(f"s_mov_b32 {s(sPOS)}, 0")
        self.xstamp("setup")
        self.dma_tile(0, which=(0,), adv=False)
        for R in range(12):
            for h in range(2): self.emit_dma(self.dma_q(h))
            for x in self.q_adv(): e(x)
        self.dma_tile(0, which=(1,))
        self.dma_tile(1); self.dma_tile(2); self.dma_tile(3)
        self.xstamp("issued")
        e("s_waitcnt vmcnt(38)") if self.opt.get('fine') else None
        self.xstamp("k0")
        self.load_q([(5 - qb) * 4 + 14 for qb in range(6)])
        self.stamp(1)
        e("s_waitcnt vmcnt(12)"); e("s_barrier")
        self.read_tile0()
        self.setup_qdma(sH1, sR1)
        self.first_max()
        self.init_item()
        e("s_waitcnt vmcnt(8) lgkmcnt(0)"); e("s_barrier")
        self.label("L_item")
        self.stamp(2)
        i0 = len(self.L)
        self.iteration(0, first=True, vm_end=11, nq=3, tail_salu=[f"s_mov_b32 {s(sCNT)}, 6"])
        self.L.append(".p2align 6") if False else None
        self.label("L_loop")
        l0 = len(self.L)
        self.iteration(1, vm_end=10, tail_salu=[f"s_sub_u32 {s(sCNT)}, {s(sCNT)}, 1", f"s_cmp_eq_u32 {s(sCNT)}, 0"])
        e("s_cbranch_scc1 L_last")
        l1 = len(self.L)
        self.iteration(2, vm_end=10)
        self.iteration(3, vm_end=10)
        self.iteration(0, vm_end=10)
        e("s_branch L_loop")
        l2 = len(self.L)
        self.label("L_last")
        self.iteration(2, last=True)
        self.drain(0)
        self.stamp(3)
        self.dma_tile(3)
        self.epilogue()
        l3 = len(self.L)
        self.stamp(4)
        e(f"s_cmp_lg_u64 {s(sBAD,2)}, 0")
        e(f"s_cselect_b32 {s(sTMP)}, 1, 0")
        e(f"s_lshl_b32 {s(sTMP)}, {s(sTMP)}, {s(sCUR)}")
        e(f"s_or_b32 {s(sFLAGS)}, {s(sFLAGS)}, {s(sTMP)}")
        e(f"s_mov_b64 {s(sBAD,2)}, 0")
        e(f"s_cmp_eq_u32 {s(sMORE)}, 0"); e("s_cbranch_scc1 L_fin")
        e(f"s_mov_b32 {s(sMORE)}, 0"); e(f"s_mov_b32 {s(sCUR)}, 1")
        e(f"s_mov_b32 {s(sHEADOFF)}, {s(sH1)}"); e(f"s_mov_b32 {s(sROW)}, {s(sR1)}")
        e(f"s_mov_b32 {s(sNEXTKV)}, {OOB}"); e(f"s_mov_b32 {s(sPOS)}, 4")
        self.setup_out()
        self.load_q([36, None, None, None, None, None])
        e("s_barrier")
        self.read_tile0()
        e(f"s_mov_b32 {s(SRD_Q+2)}, 0")
        e(f"s_mov_b32 {s(sQM0)}, {s(sQBASE)}")
        self.first_max()
        self.init_item()
        e("s_waitcnt vmcnt(32) lgkmcnt(0)"); e("s_barrier")
        if self.diag:
            e("s_waitcnt lgkmcnt(0)")
            for i in range(4, 10): e(f"s_mov_b32 {s(STAMP0 + 6 + i)}, {s(STAMP0 + i)}")
        e("s_branch L_item")
        l4 = len(self.L)
        self.label("L_fin")
        if self.diag:
            e("s_waitcnt vmcnt(0)")
            self.stamp(8)
            e(f"s_memrealtime {s(98,2)}")
            e("s_waitcnt lgkmcnt(0)")
            e(f"s_mov_b32 {s(STAMP0+18)}, s96"); e(f"s_mov_b32 {s(STAMP0+19)}, s98")
            e("s_mov_b32 s20, s14"); e("s_mov_b32 s21, s15"); e("s_mov_b32 s22, 0x10000000"); e("s_mov_b32 s23, 0x20000")
            e("v_accvgpr_read_b32 v0, a255"); e("s_nop 1")
            for i in range(20): e(f"v_writelane_b32 v0, {s(STAMP0+i)}, {i}")
            e(f"s_lshl_b32 s3, s2, 2"); e(f"s_add_u32 s3, s3, {s(sWAVE)}"); e("s_lshl_b32 s3, s3, 8")
            e("v_mbcnt_lo_u32_b32 v1, -1, 0"); e("v_mbcnt_hi_u32_b32 v1, -1, v1"); e("v_lshlrev_b32 v1, 2, v1")
            e("buffer_store_dword v0, v1, s[20:23], s3 offen")
            if self.opt.get('pad'):
                e("s_add_u32 s97, s96, 10000")
                hi, lo = {1: (0, 0), 2: (8, 0), 3: (1, 0), 4: (3, 2)}[self.opt['pad']]
                e(f"s_sub_u32 s3, {s(STAMP0+2*hi)}, {s(STAMP0+2*lo)}"); e("s_lshr_b32 s3, s3, 3"); e("s_add_u32 s97, s97, s3")
                if self.opt.get('padrt'):
                    e("s_sub_u32 s3, s98, s96"); e("s_add_u32 s97, s97, s3")
                self.label("L_spin")
                e("s_memrealtime s[98:99]"); e("s_waitcnt lgkmcnt(0)"); e("s_sub_u32 s3, s98, s97"); e("s_cmp_lt_i32 s3, 0"); e("s_cbranch_scc1 L_spin")
        self.label("L_end")
        e("s_endpgm")
        L = self.L
        errs = hazcheck.check(L[:l2] + L[l0:l1] + L[l2:l4] + L[i0:l1], "path")
        return errs
    def text(self):
        hdr = open("standalone__gqa_softmax__near_ridge.s.ref").read().split("; Override")[0]
        out = hdr + f"; @launch grid=(256,1,1) block=(256,1,1) lds={LDS_TOTAL}\n"
        out += f'.amdgcn_target "amdgcn-amd-amdhsa--gfx950"\n.text\n.globl {KN}\n.p2align 8\n.type {KN},@function\n{KN}:\n'
        out += "\n".join(self.L) + "\n"
        out += f""".section .rodata,"a"
.p2align 6
.amdhsa_kernel {KN}
  .amdhsa_next_free_vgpr 512
  .amdhsa_next_free_sgpr 102
  .amdhsa_accum_offset 256
  .amdhsa_group_segment_fixed_size 0
  .amdhsa_kernarg_size 48
  .amdhsa_user_sgpr_count 2
  .amdhsa_user_sgpr_kernarg_segment_ptr 1
  .amdhsa_system_sgpr_workgroup_id_x 1
.end_amdhsa_kernel
"""
        return out

if __name__ == "__main__":
    import argparse
    ap = argparse.ArgumentParser()
    ap.add_argument("-o", default="k.s"); ap.add_argument("--msum", default=""); ap.add_argument("--diag", action="store_true"); ap.add_argument("--opt", default="")
    A = ap.parse_args()
    opt = {}
    for kv in A.opt.split(","):
        if kv:
            k_, _, v_ = kv.partition("=")
            opt[k_] = int(v_) if v_ else 1
    g = Gen(msum=[int(c) for c in A.msum], diag=A.diag, opt=opt)
    errs = g.build()
    for x in errs[:20]: print(x)
    print("hazard errors:", len(errs))
    open(A.o, "w").write(g.text() + ("; XNAMES " + " ".join(g.xnames) + "\n" if g.xnames else ""))
```

```python
import sys, struct, math
import hazcheck

KN = "standalone__gqa_softmax__near_ridge_kernel"
HEAD_BYTES = 736 * 256
TENSOR_BYTES = 256 * HEAD_BYTES
OOB = 0x7F000000
NT = 23
LDS_Q = 65536
LDS_TOTAL = 163840
LDS_OOR = 0x30000

O_ = 0; S_ = 192; P_ = 208; NEGM = 216
QRA = 240
OWA = 242
KA = 246; VA = 248; DMAOFF = 252; OST = 253; ORA = 254; T0 = 255
QA = 0; KF = 96; VF = 160; ONES = 224; LACC = 228; TRK = 252
SRD_K = 16; SRD_V = 20; SRD_Q = 24; SRD_O = 28
sWAVE = 32; sKV = 33; sPOS = 34; sNEXTKV = 35; sQOFF = 36; sQM0 = 37; sW1K = 38; sCNT = 39
sSCALE = 40
sOOFF = 42; sTHR = 43; sMORE = 44; sTMP = 45
sBAD = 46
sQBASE = 49; sCUR = 50; sFLAGS = 51; sMODE = 52; sHEADOFF = 53; sROW = 54; sT2 = 55
sH0 = 56; sR0 = 57; sH1 = 58; sR1 = 59; sDONE = 60; sT3 = 61
STAMP0 = 64

def v(b, n=1): return f"v{b}" if n == 1 else f"v[{b}:{b+n-1}]"
def a(b, n=1): return f"a{b}" if n == 1 else f"a[{b}:{b+n-1}]"
def s(b, n=1): return f"s{b}" if n == 1 else f"s[{b}:{b+n-1}]"
def f32bits(x): return struct.unpack("<I", struct.pack("<f", x))[0]

class Gen:
    def __init__(self, diag=False, opt=None):
        self.L = []
        self.diag = diag
        self.opt = opt or {}
        self.fma = self.opt.get('fma', 0)
    def pol(self, k, dflt=0):
        x = self.opt.get('p' + k, dflt)
        return (" sc0" if x & 1 else "") + (" sc1" if x & 2 else "") + (" nt" if x & 4 else "")
    def e(self, t): self.L.append("  " + t)
    def es(self, l):
        for t in l: self.e(t)
    def label(self, t): self.L.append(t + ":")
    def stamp(self, idx):
        if self.diag: self.e(f"s_memtime {s(STAMP0 + 2*idx, 2)}")
    def mf_qk(self, qb, kvb, ks, par, sbuf, cinit='negm', dst=None):
        d = (S_ + 8 * sbuf + 4 * kvb) if dst is None else dst
        if ks == 0: c = v(NEGM + 4 * qb, 4) if (cinit == 'negm' and not self.fma) else "0"
        else: c = v(d, 4)
        return f"v_mfma_f32_16x16x32_bf16 {v(d,4)}, {a(KF + 32*par + 16*kvb + 4*ks, 4)}, {a(QA + 16*qb + 4*ks, 4)}, {c}"
    def mf_pv(self, qb, db, par, zero=False, dummy=False):
        d = O_ + 32 * qb + 4 * db
        pb = P_ + 4 * (qb & 1)
        c = "0" if zero else v(d, 4)
        aop = v(pb, 4) if dummy else a(VF + 32 * par + 4 * db, 4)
        return f"v_mfma_f32_16x16x32_bf16 {v(d,4)}, {aop}, {v(pb,4)}, {c}"
    def mf_sum(self, qb, zero=False):
        d = LACC + 4 * qb
        pb = P_ + 4 * (qb & 1)
        return f"v_mfma_f32_16x16x32_bf16 {a(d,4)}, {a(ONES,4)}, {v(pb,4)}, {'0' if zero else a(d,4)}"
    def rd_k(self, slot, par, kvb, ks):
        off = slot * 16384 + (ks >> 1) * 4096 + kvb * 2048
        return f"ds_read_b128 {a(KF + 32*par + 16*kvb + 4*ks, 4)}, {v(KA + (ks & 1))} offset:{off}"
    def rd_v(self, slot, par, db, jh):
        off = slot * 16384 + 8192 + (db >> 2) * 4096 + jh * 2048
        return f"ds_read_b64_tr_b16 {a(VF + 32*par + 4*db + 2*jh, 2)}, {v(VA + (db & 3))} offset:{off}"
    def dma_kv(self, slot, isv, h):
        base = slot * 16384 + isv * 8192 + h * (4096 - 128)
        srd = SRD_V if isv else SRD_K
        off = " offset:128" if h else ""
        return (f"s_add_u32 m0, {s(sW1K)}, {base}",
                f"buffer_load_dwordx4 {v(DMAOFF)}, {s(srd,4)}, {s(sKV)} offen{off}{self.pol('kv',4)} lds")
    def dma_q(self, h):
        off = " offset:128" if h else ""
        m0 = f"s_add_u32 m0, {s(sQM0)}, {12288 - 128}" if h else f"s_mov_b32 m0, {s(sQM0)}"
        return (m0, f"buffer_load_dwordx4 {v(DMAOFF)}, {s(SRD_Q,4)}, {s(sQOFF)} offen{off}{self.pol('q',4)} lds")
    def q_adv(self):
        return [f"s_add_u32 {s(sQM0)}, {s(sQM0)}, 1024", f"s_add_u32 {s(sQOFF)}, {s(sQOFF)}, 2048"]
    def kv_adv(self):
        return [f"s_add_u32 {s(sPOS)}, {s(sPOS)}, 1",
                f"s_add_u32 {s(sKV)}, {s(sKV)}, 8192",
                f"s_cmp_eq_u32 {s(sPOS)}, {NT}",
                f"s_cselect_b32 {s(sKV)}, {OOB}, {s(sKV)}",
                f"s_cmp_eq_u32 {s(sPOS)}, {NT+1}",
                f"s_cselect_b32 {s(sKV)}, {s(sNEXTKV)}, {s(sKV)}"]
    def o_read(self, dst, h, Roff):
        return f"ds_read_b128 {dst}, {v(ORA)} offset:{h * 12288 + Roff * 1024}"
    def o_store(self, src, h, soff, Roff=0, pol='o'):
        off = h * 128 + Roff * 2048
        return f"buffer_store_dwordx4 {src}, {v(OST)}, {s(SRD_O,4)}, {s(soff)} offen offset:{off}{self.pol(pol)}"
    def iteration(self, ph, first=False, last=False, vm_end=None, tail_salu=(), nq=1, extra=()):
        par = ph & 1; rslot = (ph + 1) & 3; wslot = ph & 3
        N = 102
        G = lambda p, i: 17 * p + i
        mf = [None] * N; sal = [[] for _ in range(N)]; vec = [[] for _ in range(N)]
        for p in range(6):
            for kvb in range(2):
                for ks in range(4):
                    mf[G(p, 4 * kvb + ks)] = self.mf_qk(p, kvb, ks, par, p & 1)
            qb = (p - 1) % 6
            vpar = par if p > 0 else par ^ 1
            for db in range(8):
                mf[G(p, 8 + db)] = self.mf_pv(qb, db, vpar, zero=first, dummy=(first and p == 0))
            mf[G(p, 16)] = self.mf_sum(qb, zero=first)
        def gap(p, i):
            p += i // 16; i %= 16
            return G(p, i) if 0 <= p < 6 else None
        fmas = []
        for p in range(-1, 6):
            qb = p % 6
            if p == -1 and first: continue
            for e_ in range(8):
                r = S_ + 8 * (qb & 1) + e_
                g = gap(p, 7 + 2 * e_)
                if g is not None: vec[g].append(f"v_exp_f32 {v(r)}, {v(r)}")
                g = gap(p, 6 + 2 * e_)
                if self.fma and g is not None: fmas.append((g, f"v_fma_f32 {v(r)}, {v(r)}, {s(sSCALE)}, {v(NEGM + 4*qb)}"))
                g = gap(p, 8 + 2 * e_)
                if g is not None and (e_ & 1): vec[g].append(f"v_cvt_pk_bf16_f32 {v(P_ + 4*(qb&1) + e_//2)}, {v(r-1)}, {v(r)}")
        for g, x in fmas: vec[g].append(x)
        rds = []
        if not last:
            rds = [self.rd_k(rslot, par ^ 1, kvb, ks) for kvb in range(2) for ks in range(4)]
            rds += [self.rd_v(rslot, par ^ 1, db, jh) for db in range(8) for jh in range(2)]
            for i, r in enumerate(rds):
                j = 4 * i
                if not self.fma and i >= 20: j = 4 * i - 4 * 4 + 2
                vec[gap(0, j)].insert(0, r)
        dm = []
        hs = (ph + 1) & 1
        adv = [f"s_add_u32 {s(sOOFF)}, {s(sOOFF)}, 2048"] if hs else []
        dm.append(((None, self.o_store(a(TRK, 4), hs, sOOFF, pol='t')), adv))
        if not last:
            for i in range(nq):
                h = (ph + i) & 1 if not first else i & 1
                dm.append((self.dma_q(h), self.q_adv() if h else []))
        for isv in range(2):
            for h in range(2):
                dm.append((self.dma_kv(wslot, isv, h), []))
        dm[-1] = (dm[-1][0], self.kv_adv())
        cand = [G(p, 16) for p in range(5)]
        for g in range(1, N - 16):
            if len(cand) >= len(dm): break
            if len(vec[g]) == 0 and all(abs(g - o) >= 2 for o in cand): cand.append(g)
        g = 8
        while len(cand) < len(dm):
            cand.append(g); g += 17
        cand = sorted(cand)[:len(dm)]
        post = []
        for (g, ((m0, d), adv)) in zip(cand, dm):
            if m0: sal[g - 1].append(m0)
            vec[g].insert(0, d)
            post.append((g + 1, adv))
        for g, adv in post:
            for x in adv:
                while sal[g]: g += 1
                sal[g].append(x); g += 1
        if not last:
            g = gap(2, 10)
            hr = ph & 1
            if hr == 0: vec[gap(2, 6)].append(f"v_add_u32 {v(ORA)}, 1024, {v(ORA)}")
            vec[g].insert(0, self.o_read(a(TRK, 4), hr, 0))
            assert g > cand[0] + 1
        for (g, x) in extra:
            if x.startswith(("ds_", "buffer_")): vec[g].insert(0, x)
            elif x.startswith("s_"): sal[g].append(x)
            else: vec[g].append(x)
        g = N - 8
        for x in tail_salu:
            while sal[g]: g += 1
            sal[g].append(x); g += 1
        if vm_end is not None:
            assert not sal[N - 2] and not sal[N - 1]
            sal[N - 2].append(f"s_waitcnt vmcnt({vm_end}) lgkmcnt(0)")
            sal[N - 1].append("s_barrier")
        for p in range(6):
            g0 = G(p, 3); g1 = G(p, 6 if self.fma else 7)
            n = sum(len(sal[g]) + len(vec[g]) for g in range(g0, g1)) + (g1 - g0) + len(sal[g1]) + (len(vec[g1]) - 1 if self.fma else 0)
            g = g0
            while n < 8:
                if not sal[g]: sal[g].append("s_nop 0"); n += 1
                g += 1
                assert g <= g1 + 1
        for g in range(N):
            self.e(mf[g]); self.es(sal[g]); self.es(vec[g])
    def drain(self, par):
        qb = 5
        for e_ in range(5, 8):
            r = S_ + 8 + e_
            if self.fma: self.e(f"v_fma_f32 {v(r)}, {v(r)}, {s(sSCALE)}, {v(NEGM + 4*qb)}")
            self.e(f"v_exp_f32 {v(r)}, {v(r)}")
        self.e("s_nop 0")
        for e_ in (5, 7):
            r = S_ + 8 + e_
            self.e(f"v_cvt_pk_bf16_f32 {v(P_ + 4 + e_//2)}, {v(r-1)}, {v(r)}")
        self.e("s_nop 1")
        return [self.mf_pv(qb, db, par) for db in range(8)] + [self.mf_sum(qb)]
    def e_l(self, qb, l):
        return [f"v_accvgpr_read_b32 {v(l)}, {a(LACC + 4*qb)}",
                f"v_cmp_nge_f32 vcc, {s(sTHR)}, {v(l)}",
                f"v_rcp_f32 {v(l)}, {v(l)}",
                f"s_or_b64 {s(sBAD,2)}, {s(sBAD,2)}, vcc"]
    def e_mul(self, qb, l, db, pk=True):
        o = O_ + 32 * qb + 4 * db
        if pk:
            r = [f"v_pk_mul_f32 {v(o+2*i,2)}, {v(o+2*i,2)}, {v(l,2)} op_sel_hi:[1,0]" for i in range(2)]
        else:
            r = [f"v_mul_f32 {v(o+i)}, {v(l)}, {v(o+i)}" for i in range(4)]
        return r + [f"v_cvt_pk_bf16_f32 {v(o+i)}, {v(o+2*i)}, {v(o+2*i+1)}" for i in range(2)]
    def e_wr(self, qb, db):
        o = O_ + 32 * qb + 4 * db
        return f"ds_write_b64 {v(OWA + (db & 3))}, {v(o,2)} offset:{(db >> 2) * 12288 + qb * 2048}"
    def q_rd(self, qb, t):
        if self.fma:
            return [f"ds_read_b128 {a(QA+16*qb+4*ks,4)}, {v(QRA + (ks&1))} offset:{(ks>>1)*12288 + qb*2048}" for ks in range(4)]
        return [f"ds_read_b128 {v(t+4*ks,4)}, {v(QRA + (ks&1))} offset:{(ks>>1)*12288 + qb*2048}" for ks in range(4)]
    def q_conv(self, qb, t, y):
        if self.fma: return []
        r = []
        for i in range(16):
            x = t + i
            r += [f"v_lshlrev_b32 {v(y)}, 16, {v(x)}", f"v_and_b32 {v(y+1)}, 0xffff0000, {v(x)}",
                  f"v_pk_mul_f32 {v(y,2)}, {v(y,2)}, {s(sSCALE,2)}",
                  f"v_cvt_pk_bf16_f32 {v(x)}, {v(y)}, {v(y+1)}",
                  f"v_accvgpr_write_b32 {a(QA + 16*qb + i)}, {v(x)}"]
        return r
    def m_mfma(self, qb, t): return [self.mf_qk(qb, 0, ks, 0, 0, cinit='zero', dst=t) for ks in range(4)]
    def m_valu(self, qb, t):
        r = [f"v_max3_f32 {v(t)}, {v(t)}, {v(t+1)}, {v(t+2)}", f"v_max_f32 {v(t)}, {v(t)}, {v(t+3)}",
             f"v_mov_b32 {v(t+1)}, {v(t)}", "s_nop 1", f"v_permlane16_swap_b32 {v(t)}, {v(t+1)}", f"v_max_f32 {v(t)}, {v(t)}, {v(t+1)}",
             f"v_mov_b32 {v(t+1)}, {v(t)}", "s_nop 1", f"v_permlane32_swap_b32 {v(t)}, {v(t+1)}"]
        if self.fma:
            r += [f"v_min_f32 {v(t)}, -{v(t)}, -{v(t+1)}", f"v_mul_f32 {v(NEGM+4*qb)}, {s(sSCALE)}, {v(t)}"]
        else:
            r += [f"v_min_f32 {v(NEGM+4*qb+i)}, -{v(t)}, -{v(t+1)}" for i in range(4)]
        return r
    def rd_k0(self): return [self.rd_k(0, 0, kvb, ks) for kvb in range(2) for ks in range(4)]
    def rd_v0(self): return [self.rd_v(0, 0, db, jh) for db in range(8) for jh in range(2)]
    def init_item(self):
        for i in range(4): self.e(f"v_mov_b32 {v(P_+4+i)}, 0")
    def set_srd_base(self, srd, ptr, off):
        self.e(f"s_add_u32 {s(srd)}, {s(ptr)}, {s(off)}")
        self.e(f"s_addc_u32 {s(srd+1)}, {s(ptr+1)}, 0")
    def setup_qdma(self, hoff, row):
        self.set_srd_base(SRD_Q, 4, hoff)
        self.e(f"s_mul_i32 {s(sTMP)}, {s(sWAVE)}, 88")
        self.e(f"s_add_u32 {s(sTMP)}, {s(sTMP)}, {s(row)}")
        self.e(f"s_lshl_b32 {s(sQOFF)}, {s(sTMP)}, 8")
        self.e(f"s_mov_b32 {s(sQM0)}, {s(sQBASE)}")
    def setup_out(self):
        self.set_srd_base(SRD_O, 10, sHEADOFF)
        self.e(f"s_mov_b32 {s(SRD_O+2)}, {HEAD_BYTES}")
        self.e(f"s_mul_i32 {s(sTMP)}, {s(sWAVE)}, 96")
        self.e(f"s_add_u32 {s(sTMP)}, {s(sTMP)}, {s(sROW)}")
        self.e(f"s_lshl_b32 {s(sOOFF)}, {s(sTMP)}, 8")
    def reset_ora(self):
        self.e(f"v_and_b32 {v(ORA)}, 0x3ff, {v(ORA)}")
        self.e(f"v_add_u32 {v(ORA)}, {s(sQBASE)}, {v(ORA)}")
    def emit_dma(self, pair):
        self.e(pair[0]); self.e("s_nop 0"); self.e(pair[1])
    def dma_tile(self, slot, which=(0, 1), adv=True):
        for isv in which:
            for h in range(2): self.emit_dma(self.dma_kv(slot, isv, h))
        if adv: self.es(self.kv_adv())
    def dma_qblock(self):
        for R in range(2):
            for h in range(2): self.emit_dma(self.dma_q(h))
            self.es(self.q_adv())
    def flag_item(self):
        e = self.e
        e(f"s_cmp_lg_u64 {s(sBAD,2)}, 0")
        e(f"s_cselect_b32 {s(sTMP)}, 1, 0")
        e(f"s_lshl_b32 {s(sTMP)}, {s(sTMP)}, {s(sCUR)}")
        e(f"s_or_b32 {s(sFLAGS)}, {s(sFLAGS)}, {s(sTMP)}")
        e(f"s_mov_b64 {s(sBAD,2)}, 0")

    def build(self):
        e = self.e; es = self.es
        e("s_cmp_ge_u32 s2, 256"); e("s_cbranch_scc1 L_end")
        e("s_load_dwordx4 s[4:7], s[0:1], 0"); e("s_load_dwordx4 s[8:11], s[0:1], 16")
        if self.diag:
            e("s_load_dwordx4 s[12:15], s[0:1], 32"); e(f"s_memrealtime {s(96,2)}")
        self.stamp(0)
        e("v_lshrrev_b32 v1, 6, v0"); e("v_and_b32 v2, 63, v0")
        e(f"v_readfirstlane_b32 {s(sWAVE)}, v1")
        e("v_lshrrev_b32 v5, 3, v2")
        e("v_and_b32 v6, 6, v5")
        e("v_and_b32 v7, 7, v2")
        e("v_xor_b32 v6, v6, v7")
        e("v_lshlrev_b32 v6, 4, v6")
        e("v_lshrrev_b32 v8, 3, v0")
        e(f"v_lshl_add_u32 {v(DMAOFF)}, v8, 8, v6")
        e(f"s_lshl_b32 {s(sW1K)}, {s(sWAVE)}, 10")
        e(f"s_mul_i32 {s(sQBASE)}, {s(sWAVE)}, 24576")
        e(f"s_add_u32 {s(sQBASE)}, {s(sQBASE)}, {LDS_Q}")
        e(f"s_and_b32 {s(sTMP)}, s2, 7"); e(f"s_lshl_b32 {s(sTMP)}, {s(sTMP)}, 5")
        e(f"s_lshr_b32 {s(sT2)}, s2, 4"); e(f"s_add_u32 {s(sTMP)}, {s(sTMP)}, {s(sT2)}")
        e(f"s_mul_i32 {s(sH0)}, {s(sTMP)}, {HEAD_BYTES}")
        e(f"s_add_u32 {s(sH1)}, {s(sH0)}, {16 * HEAD_BYTES}")
        e(f"s_bfe_u32 {s(sT2)}, s2, 0x10003")
        e(f"s_mul_i32 {s(sR0)}, {s(sT2)}, 384")
        e(f"s_sub_u32 {s(sR1)}, 384, {s(sR0)}")
        for srd in (SRD_K, SRD_V):
            e(f"s_mov_b32 {s(srd+2)}, {TENSOR_BYTES}"); e(f"s_mov_b32 {s(srd+3)}, 0x20000")
        e(f"s_mov_b32 {s(SRD_Q+2)}, {HEAD_BYTES}"); e(f"s_mov_b32 {s(SRD_Q+3)}, 0x20000")
        e(f"s_mov_b32 {s(SRD_O+2)}, 0"); e(f"s_mov_b32 {s(SRD_O+3)}, 0x20000")
        e(f"s_mov_b32 {s(sHEADOFF)}, {s(sH0)}"); e(f"s_mov_b32 {s(sROW)}, {s(sR0)}")
        e(f"s_mov_b32 {s(sNEXTKV)}, {s(sH1)}"); e(f"s_mov_b32 {s(sMORE)}, 1")
        e(f"s_mov_b32 {s(sKV)}, {s(sHEADOFF)}"); e(f"s_mov_b32 {s(sPOS)}, 0")
        e("s_waitcnt lgkmcnt(0)")
        for srd, ptr in ((SRD_K, 6), (SRD_V, 8), (SRD_O, 10)):
            e(f"s_mov_b32 {s(srd)}, {s(ptr)}"); e(f"s_mov_b32 {s(srd+1)}, {s(ptr+1)}")
        self.dma_tile(0, which=(0,), adv=False)
        self.setup_qdma(sHEADOFF, sROW)
        for qb in range(3): self.dma_qblock()
        e("v_and_b32 v3, 15, v2")
        e("v_lshrrev_b32 v4, 4, v2")
        e("v_xor_b32 v6, v5, v7"); e("v_lshlrev_b32 v6, 4, v6")
        e(f"v_lshl_add_u32 {v(OST)}, v5, 8, v6")
        e(f"v_lshlrev_b32 {v(ORA)}, 4, v2")
        e("v_and_b32 v5, 6, v3"); e("v_xor_b32 v6, v4, v5"); e("v_lshlrev_b32 v6, 4, v6")
        e(f"v_lshl_add_u32 {v(KA)}, v3, 7, v6")
        e(f"v_xor_b32 {v(KA+1)}, 64, {v(KA)}")
        e(f"v_add_u32 {v(QRA)}, {s(sQBASE)}, {v(KA)}"); e(f"v_add_u32 {v(QRA+1)}, {s(sQBASE)}, {v(KA+1)}")
        e("v_lshrrev_b32 v5, 2, v2"); e("v_and_b32 v6, 6, v5"); e("v_lshlrev_b32 v6, 4, v6")
        e("v_and_b32 v7, 3, v2"); e("v_lshlrev_b32 v7, 3, v7"); e("v_lshl_add_u32 v7, v5, 7, v7")
        e(f"v_add_u32 {v(VA)}, v6, v7")
        for i in range(1, 4): e(f"v_xor_b32 {v(VA+i)}, {32*i}, {v(VA)}")
        e("v_lshrrev_b32 v5, 1, v4"); e("v_and_b32 v6, 7, v3"); e("v_xor_b32 v5, v5, v6"); e("v_lshlrev_b32 v5, 4, v5")
        e("v_and_b32 v6, 1, v4"); e("v_lshl_add_u32 v5, v6, 3, v5"); e("v_lshl_add_u32 v5, v3, 7, v5")
        e(f"v_add_u32 {v(OWA)}, {s(sQBASE)}, v5")
        for i in range(1, 4): e(f"v_xor_b32 {v(OWA+i)}, {32*i}, {v(OWA)}")
        self.reset_ora()
        e("v_mov_b32 v5, 0x3f803f80")
        for i in range(4): e(f"v_accvgpr_write_b32 {a(ONES+i)}, v5")
        cbits = hex(f32bits(math.log2(math.e) / math.sqrt(128.0)))
        e(f"s_mov_b32 {s(sSCALE)}, {cbits}"); e(f"s_mov_b32 {s(sSCALE+1)}, {cbits}")
        e(f"s_mov_b32 {s(sTHR)}, {hex(f32bits(2.0**64))}")
        e(f"s_mov_b64 {s(sBAD,2)}, 0"); e(f"s_mov_b32 {s(sFLAGS)}, 0"); e(f"s_mov_b32 {s(sCUR)}, 0"); e(f"s_mov_b32 {s(sOOFF)}, 0")
        self.init_item()
        self.dma_qblock()
        e("s_waitcnt vmcnt(16)"); e("s_barrier")
        es(self.rd_k0())
        groups = [lambda: self.dma_qblock(), lambda: self.dma_qblock(),
                  lambda: (self.dma_tile(0, which=(1,)), self.dma_tile(1, which=(0,), adv=False)),
                  lambda: (self.dma_tile(1, which=(1,)), self.dma_tile(2, which=(0,), adv=False)),
                  lambda: (self.dma_tile(2, which=(1,)), self.dma_tile(3, which=(0,), adv=False)),
                  lambda: self.dma_tile(3, which=(1,))]
        for qb in range(6):
            e("s_waitcnt vmcnt(12)")
            t = O_ + 32 * qb
            es(self.q_rd(qb, t))
            groups[qb]()
            if qb > 0: es(self.m_valu(qb - 1, O_ + 32 * (qb - 1) + 20))
            e("s_waitcnt lgkmcnt(0)")
            es(self.q_conv(qb, t, t + 16))
            e("s_nop 1")
            es(self.m_mfma(qb, t + 20))
        self.stamp(1)
        e("s_waitcnt vmcnt(12)"); e("s_barrier")
        es(self.rd_v0())
        self.setup_qdma(sH1, sR1)
        es(self.m_valu(5, O_ + 32 * 5 + 20))
        e("s_waitcnt vmcnt(8) lgkmcnt(0)"); e("s_barrier")
        self.label("L_item")
        self.stamp(2)
        if self.diag: e("s_memrealtime s[90:91]")
        i0 = len(self.L)
        self.iteration(0, first=True, vm_end=12, nq=3, tail_salu=[f"s_mov_b32 {s(sCNT)}, 6"])
        self.label("L_loop")
        l0 = len(self.L)
        self.iteration(1, vm_end=12, tail_salu=[f"s_sub_u32 {s(sCNT)}, {s(sCNT)}, 1", f"s_cmp_eq_u32 {s(sCNT)}, 0"])
        e("s_cbranch_scc1 L_last")
        l1 = len(self.L)
        self.iteration(2, vm_end=12)
        self.iteration(3, vm_end=12)
        self.iteration(0, vm_end=12)
        e("s_branch L_loop")
        l2 = len(self.L)
        self.label("L_last")
        self.iteration(2, last=True, vm_end=9, tail_salu=[f"s_cmp_eq_u32 {s(sMORE)}, 0"])
        e("s_cbranch_scc1 L_final")
        lb = len(self.L)
        es(self.q_rd(0, NEGM))
        if self.fma:
            for qb in range(1, 6): es(self.q_rd(qb, 0))
        pv = self.drain(0)
        es(pv)
        self.stamp(3)
        if self.diag: e("s_memrealtime s[92:93]")
        es(self.rd_k0())
        self.dma_tile(3)
        self.setup_out()
        self.reset_ora()
        Lr = S_
        Y = S_ + 12
        e("s_waitcnt lgkmcnt(8)")
        es(self.q_conv(0, NEGM, Y))
        es(self.rd_v0())
        tq = {1: O_, 2: O_ + 16, 3: O_ + 32, 4: O_ + 48, 5: O_ + 64}
        for qb in range(6):
            l = Lr + 2 * (qb & 1)
            es(self.e_l(qb, l))
            for db in range(8): es(self.e_mul(qb, l, db))
            if qb > 0 and not self.fma: e("s_waitcnt lgkmcnt(0)")
            for db in range(8): e(self.e_wr(qb, db))
            if not self.fma:
                nxt = {0: (1, 2), 1: (3, 4), 2: (5,)}.get(qb, ())
                if nxt: e("s_waitcnt lgkmcnt(0)")
                for n_ in nxt: es(self.q_rd(n_, tq[n_]))
                if qb > 0: es(self.q_conv(qb, tq[qb], Y))
        self.flag_item()
        self.stamp(4)
        e("s_waitcnt lgkmcnt(0)")
        mt = O_ + 96
        e(self.o_read(v(O_ + 128, 4), 0, 0)); e(self.o_read(a(TRK, 4), 1, 0))
        for qb in range(6): es(self.m_mfma(qb, mt + 4 * qb))
        e(f"s_mov_b32 {s(sMORE)}, 0"); e(f"s_mov_b32 {s(sCUR)}, 1")
        e(f"s_mov_b32 {s(sHEADOFF)}, {s(sH1)}"); e(f"s_mov_b32 {s(sROW)}, {s(sR1)}")
        e(f"s_mov_b32 {s(sNEXTKV)}, {OOB}"); e(f"s_mov_b32 {s(sPOS)}, 4")
        e(f"s_mov_b32 {s(SRD_Q+2)}, 0"); e(f"s_mov_b32 {s(sQM0)}, {LDS_OOR}")
        e("s_waitcnt lgkmcnt(0)")
        e(self.o_store(v(O_ + 128, 4), 0, sOOFF, pol='t'))
        for qb in range(6): es(self.m_valu(qb, mt + 4 * qb))
        self.init_item()
        e("s_waitcnt vmcnt(10) lgkmcnt(0)"); e("s_barrier")
        if self.diag:
            e("s_waitcnt lgkmcnt(0)")
            for i in range(4, 10): e(f"s_mov_b32 {s(STAMP0 + 6 + i)}, {s(STAMP0 + i)}")
        e("s_branch L_item")
        l4 = len(self.L)
        self.label("L_final")
        pv = self.drain(0)
        es(pv)
        self.stamp(3)
        if self.diag: e("s_memrealtime s[92:93]")
        self.setup_out()
        self.reset_ora()
        for qb in range(7):
            if qb < 6:
                l = Lr + 2 * (qb & 1)
                es(self.e_l(qb, l))
                for db in range(8):
                    es(self.e_mul(qb, l, db))
            if qb > 0:
                p = qb - 1
                e("s_waitcnt lgkmcnt(0)")
                for c in range(4):
                    e(self.o_store(v(O_ + 32 * p + 4 * c, 4), c & 1, sOOFF, Roff=c >> 1))
                e(f"s_add_u32 {s(sOOFF)}, {s(sOOFF)}, 4096")
            if qb < 6:
                for db in range(8): e(self.e_wr(qb, db))
                e("s_waitcnt lgkmcnt(0)")
                for c in range(4):
                    e(self.o_read(v(O_ + 32 * qb + 4 * c, 4), c & 1, 2 * qb + (c >> 1)))
        self.flag_item()
        self.stamp(4)
        l5 = len(self.L)
        self.label("L_fin")
        if self.diag:
            e("s_waitcnt vmcnt(0)")
            self.stamp(8)
            e(f"s_memrealtime {s(98,2)}")
            e("s_waitcnt lgkmcnt(0)")
            e(f"s_mov_b32 {s(STAMP0+18)}, s96"); e(f"s_mov_b32 {s(STAMP0+19)}, s98")
            e("s_mov_b32 s20, s14"); e("s_mov_b32 s21, s15"); e("s_mov_b32 s22, 0x10000000"); e("s_mov_b32 s23, 0x20000")
            e("v_mov_b32 v0, 0")
            for i in range(20): e(f"v_writelane_b32 v0, {s(STAMP0+i)}, {i}")
            e("s_sub_u32 s92, s92, s90"); e("v_writelane_b32 v0, s92, 63")
            e(f"s_lshl_b32 s3, s2, 2"); e(f"s_add_u32 s3, s3, {s(sWAVE)}"); e("s_lshl_b32 s3, s3, 8")
            e("v_mbcnt_lo_u32_b32 v1, -1, 0"); e("v_mbcnt_hi_u32_b32 v1, -1, v1"); e("v_lshlrev_b32 v1, 2, v1")
            e("buffer_store_dword v0, v1, s[20:23], s3 offen")
        self.label("L_end")
        e("s_endpgm")
        L = self.L
        errs = hazcheck.check(L[:l2] + L[l0:l1] + L[l2:l4] + L[i0:l1] + L[l2:lb] + L[l4:l5], "path")
        return errs
    def text(self):
        hdr = open("standalone__gqa_softmax__near_ridge.s.ref").read().split("; Override")[0]
        out = hdr + f"; @launch grid=(256,1,1) block=(256,1,1) lds={LDS_TOTAL}\n"
        out += f'.amdgcn_target "amdgcn-amd-amdhsa--gfx950"\n.text\n.globl {KN}\n.p2align 8\n.type {KN},@function\n{KN}:\n'
        out += "\n".join(self.L) + "\n"
        out += f""".section .rodata,"a"
.p2align 6
.amdhsa_kernel {KN}
  .amdhsa_next_free_vgpr 512
  .amdhsa_next_free_sgpr 102
  .amdhsa_accum_offset 256
  .amdhsa_group_segment_fixed_size 0
  .amdhsa_kernarg_size 48
  .amdhsa_user_sgpr_count 2
  .amdhsa_user_sgpr_kernarg_segment_ptr 1
  .amdhsa_system_sgpr_workgroup_id_x 1
.end_amdhsa_kernel
"""
        return out

if __name__ == "__main__":
    import argparse
    ap = argparse.ArgumentParser()
    ap.add_argument("-o", default="k.s"); ap.add_argument("--diag", action="store_true"); ap.add_argument("--opt", default="")
    A = ap.parse_args()
    opt = {}
    for kv in A.opt.split(","):
        if kv:
            k_, _, v_ = kv.partition("=")
            opt[k_] = int(v_) if v_ else 1
    g = Gen(diag=A.diag, opt=opt)
    errs = g.build()
    for x in errs[:20]: print(x)
    print("hazard errors:", len(errs))
    open(A.o, "w").write(g.text())
```

```python
import re
TRANS = ('v_exp_f32', 'v_log_f32', 'v_rcp_f32', 'v_rsq_f32', 'v_sqrt_f32')
def regs(tok):
    tok = tok.strip()
    neg = tok.lstrip('-')
    m = re.fullmatch(r'([vas])\[(\d+):(\d+)\]', neg)
    if m: return {(m.group(1), i) for i in range(int(m.group(2)), int(m.group(3)) + 1)}
    m = re.fullmatch(r'([vas])(\d+)', neg)
    if m: return {(m.group(1), int(m.group(2)))}
    if neg == 'vcc': return {('s', 'vcc')}
    if neg == 'm0': return {('s', 'm0')}
    if neg == 'exec': return {('s', 'exec')}
    return set()
class I: pass
def parse(line):
    line = line.split(';')[0].strip()
    if not line or line.endswith(':') or line.startswith('.'): return None
    p = line.split(None, 1)
    op = p[0]; rest = p[1] if len(p) > 1 else ''
    ops = [x.strip() for x in rest.split(',')] if rest else []
    ops2 = []
    for o in ops:
        ops2.append(o.split()[0] if o else o)
    i = I(); i.op = op; i.text = line; i.ws = 1
    i.w = set(); i.r = set(); i.kind = 'other'; i.A = i.B = i.C = set()
    if op == 's_nop': i.ws = int(ops2[0]) + 1; i.kind = 'nop'
    elif op.startswith('v_mfma'):
        i.kind = 'mfma'; i.w = regs(ops2[0]); i.A = regs(ops2[1]); i.B = regs(ops2[2]); i.C = regs(ops2[3])
        i.r = i.A | i.B | i.C; i.npass = 4 if '16x16x32' in op else 8
    elif op.startswith('ds_read'):
        i.kind = 'dsr'; i.w = regs(ops2[0]); i.r = regs(ops2[1])
    elif op.startswith('ds_write') or op.startswith('ds_or') or op.startswith('ds_add'):
        i.kind = 'dsw'; i.r = regs(ops2[0]) | regs(ops2[1]); i.data = regs(ops2[1])
    elif op.startswith('buffer_load'):
        if ' lds' in line:
            i.kind = 'dma'; i.r = regs(ops2[0]) | regs(ops2[1]) | regs(ops2[2]) | {('s', 'm0')}
        else:
            i.kind = 'vload'; i.w = regs(ops2[0]); i.r = regs(ops2[1]) | regs(ops2[2]) | regs(ops2[3])
    elif op.startswith('buffer_store'):
        i.kind = 'vstore'; i.data = regs(ops2[0]); i.r = regs(ops2[0]) | regs(ops2[1]) | regs(ops2[2]) | regs(ops2[3])
    elif op.startswith('v_permlane'):
        i.kind = 'valu'; i.w = regs(ops2[0]) | regs(ops2[1]); i.r = set(i.w)
    elif op.startswith('v_'):
        i.kind = 'valu'; i.w = regs(ops2[0])
        for o in ops2[1:]: i.r |= regs(o)
        if op.startswith('v_fmac') or op.startswith('v_writelane'): i.r |= i.w
        if op.startswith('v_cndmask') and len(ops2) == 3: i.r |= {('s', 'vcc')}
    elif op.startswith('s_waitcnt'):
        i.kind = 'wait'
        m = re.search(r'lgkmcnt\((\d+)\)', line); i.lgkm = int(m.group(1)) if m else None
        m = re.search(r'vmcnt\((\d+)\)', line); i.vm = int(m.group(1)) if m else None
    elif op.startswith('s_'):
        i.kind = 'salu'
        if ops2 and not op.startswith(('s_cmp', 's_cbranch', 's_branch', 's_barrier', 's_setprio', 's_endpgm')):
            i.w = regs(ops2[0])
            for o in ops2[1:]: i.r |= regs(o)
    return i
def need_ws(x, y):
    n = 0
    if x.kind == 'valu' and y.kind == 'mfma' and (x.w & y.r): n = max(n, 2)
    if x.kind == 'mfma':
        big = 8 if x.npass == 4 else 12
        if y.kind == 'valu' and (x.w & (y.r | y.w)): n = max(n, big)
        if y.kind in ('dsr', 'dsw', 'dma', 'vload', 'vstore') and (x.w & (y.r | y.w)): n = max(n, big)
        if y.kind == 'mfma':
            if x.w & (y.A | y.B): n = max(n, big)
            if (x.w & y.C) and x.w != y.C: n = max(n, big - 2)
        if y.kind == 'valu' and (x.C & y.w): n = max(n, 3 if x.npass == 4 else 7)
    if x.kind == 'valu' and x.op in TRANS and y.kind == 'valu' and y.op not in TRANS and (x.w & y.r): n = max(n, 1)
    if x.kind == 'valu' and y.op.startswith('v_permlane') and (x.w & y.r): n = max(n, 2)
    if x.kind == 'valu' and y.op.startswith(('v_readfirstlane', 'v_readlane')) and (x.w & y.r): n = max(n, 1)
    if x.kind == 'valu' and 'dpp' in y.op and (x.w & y.r): n = max(n, 2)
    sw = {r for r in x.w if r[0] == 's'}
    if x.kind == 'valu' and sw:
        if y.kind == 'valu' and (sw & y.r): n = max(n, 2)
        if y.kind in ('dma', 'vload', 'vstore') and (sw & y.r): n = max(n, 5)
    if x.kind == 'salu' and ('s', 'm0') in x.w and y.kind == 'dma': n = max(n, 1)
    if x.kind == 'vstore' and y.kind in ('valu', 'mfma', 'dsr', 'vload') and (x.data & y.w): n = max(n, 2)
    if x.kind == 'dsw' and y.kind == 'valu' and (x.data & y.w): n = max(n, 2)
    return n
def first_short(lines, start):
    ins = [parse(l) for l in lines]
    for b in range(start, len(ins)):
        y = ins[b]
        if y is None: continue
        d = 0; a = b - 1; miss = 0
        while a >= 0 and d < 16:
            x = ins[a]
            if x is not None:
                miss = max(miss, need_ws(x, y) - d)
                d += x.ws
            a -= 1
        if miss > 0: return b, miss
    return None
def check(lines, name=''):
    ins = [x for x in (parse(l) for l in lines) if x]
    errs = []
    def dist(a, b):
        return sum(ins[k].ws for k in range(a + 1, b))
    for b, y in enumerate(ins):
        d = 0
        a = b - 1
        while a >= 0 and d < 24:
            x = ins[a]
            def need(n, why):
                if d < n: errs.append(f"{name}: {why}: need {n} have {d}\n    {x.text}\n    {y.text}")
            if x.kind == 'valu' and y.kind == 'mfma' and (x.w & y.r): need(2, 'valu->mfma')
            if x.kind == 'mfma':
                big = 8 if x.npass == 4 else 12
                if y.kind in ('valu',) and (x.w & (y.r | y.w)): need(big, 'mfma D->valu')
                if y.kind in ('dsr', 'dsw', 'dma', 'vload', 'vstore') and (x.w & (y.r | y.w)): need(big, 'mfma D->mem')
                if y.kind == 'mfma':
                    if x.w & (y.A | y.B): need(big, 'mfma D->mfma AB')
                    if (x.w & y.C) and x.w != y.C: need(big - 2, 'mfma D->mfma C partial')
                if y.kind == 'valu' and (x.C & y.w): need(3 if x.npass == 4 else 7, 'mfma C WAR')
            if x.kind == 'valu' and x.op in TRANS and y.kind in ('valu',) and y.op not in TRANS and (x.w & y.r): need(1, 'trans->valu')
            if x.kind == 'valu' and y.op.startswith('v_permlane') and (x.w & y.r): need(2, 'valu->permlane')
            if x.kind == 'valu' and y.op.startswith(('v_readfirstlane', 'v_readlane')) and (x.w & y.r): need(1, 'valu->readlane')
            if x.kind == 'valu' and 'dpp' in y.op and (x.w & y.r): need(2, 'valu->dpp')
            sw = {r for r in x.w if r[0] == 's'}
            if x.kind == 'valu' and sw:
                if y.kind == 'valu' and (sw & y.r): need(2, 'valu sgpr->valu')
                if y.kind in ('dma', 'vload', 'vstore') and (sw & y.r): need(5, 'valu sgpr->vmem')
            if x.kind == 'salu' and ('s', 'm0') in x.w and y.kind == 'dma': need(1, 'm0->dma')
            if x.kind == 'vstore' and y.kind in ('valu', 'mfma', 'dsr', 'vload') and (x.data & y.w): need(2, 'store data WAR')
            d += x.ws
            a -= 1
    q = []
    vq = []
    for y in ins:
        if y.kind == 'wait':
            if y.lgkm is not None:
                while len(q) > y.lgkm: q.pop(0)
            if y.vm is not None:
                while len(vq) > y.vm: vq.pop(0)
            continue
        pend = set().union(*[x.w for x in q]) if q else set()
        if pend & (y.r | y.w): errs.append(f"{name}: use of pending ds_read result\n    {y.text}")
        pend = set().union(*[x.w for x in vq]) if vq else set()
        if pend & (y.r | y.w): errs.append(f"{name}: use of pending vload result\n    {y.text}")
        if y.kind in ('dsr', 'dsw'): q.append(y)
        if y.kind in ('dma', 'vload', 'vstore'): vq.append(y)
        if len(q) > 15 and y.kind in ('dsr', 'dsw'): pass
    return errs
```

```python
import hazcheck, re
def kind(t):
    if t.startswith("v_exp") or t.startswith("v_rcp") or t.startswith("v_permlane"): return 'x2'
    if t.startswith("ds_"): return 'ds'
    if t.startswith("buffer_"): return 'vm'
    if t.startswith("s_"): return 's'
    return 'v'
COST = {'x2': 2, 'ds': 1, 'vm': 2, 'v': 1, 's': 1}
class Region:
    def __init__(self, spine):
        self.mf = list(spine); n = len(spine)
        self.sal = [[] for _ in range(n)]; self.head = [[] for _ in range(n)]; self.vec = [[] for _ in range(n)]
        self.N = n
    def used(self, g):
        u = sum(COST[kind(x)] for x in self.head[g] + self.vec[g])
        u += max(0, len(self.sal[g]) - 1)
        return u
    def pin(self, g, t):
        k = kind(t)
        if k in ('ds', 'vm'): self.head[g].append(t)
        elif k == 's': self.sal[g].append(t)
        else: self.vec[g].append(t)
    def place(self, t, lo, hi, cap=2):
        c = COST[kind(t)]
        hi = min(hi, self.N - 1); lo = min(lo, hi)
        if kind(t) == 's':
            for g in range(lo, hi + 1):
                if not self.sal[g]:
                    self.sal[g].append(t); return g
            self.sal[hi].append(t); return hi
        for g in range(lo, hi + 1):
            if self.used(g) + c <= cap and not (t.startswith("ds_read_b128") and any(x.startswith("ds_read_b128") for x in self.head[g])):
                self.pin(g, t); return g
        g = min(range(lo, hi + 1), key=lambda x: self.used(x))
        self.pin(g, t); return g
    def place_seq(self, ops, lo, hi, cap=2):
        hi = min(hi, self.N - 1)
        while True:
            g = lo; plan = []; extra = {}
            ok = True
            for t in ops:
                c = COST[kind(t)]
                while g <= hi and (self.used(g) + extra.get(g, 0) + c > cap or
                                   (cap <= 2 and t.startswith("ds_read_b128") and (any(x.startswith("ds_read_b128") for x in self.head[g]) or any(p == g and x.startswith("ds_read_b128") for p, x in plan)))):
                    g += 1
                if g > hi: ok = False; break
                plan.append((g, t)); extra[g] = extra.get(g, 0) + c
            if ok: break
            cap += 1
        for g, t in plan: self.pin(g, t)
        return [g for g, _ in plan]
    def stream(self, ops, lo, hi):
        hi = min(hi, self.N - 1)
        cap = 2
        while True:
            g = lo; plan = []; extra = {}; ok = True; lastvec = -1
            for t in ops:
                k = kind(t); c = COST[k]
                if k in ('ds', 'vm') and lastvec >= g: g = lastvec + 1
                if k == 's':
                    if lastvec >= g or any(p == g for p, _, _ in plan) or self.sal[g]:
                        plan.append((g, t, 'vec')); extra[g] = extra.get(g, 0) + 1; lastvec = g
                    else:
                        plan.append((g, t, 'sal'))
                    continue
                while g <= hi and self.used(g) + extra.get(g, 0) + c > cap: g += 1
                if g > hi: ok = False; break
                plan.append((g, t, 'head' if k in ('ds', 'vm') else 'vec')); extra[g] = extra.get(g, 0) + c
                if k not in ('ds', 'vm'): lastvec = g
            if ok: break
            cap += 1
        for g, t, w in plan: getattr(self, w)[g].append(t)
        return cap, plan[-1][0]
    def lines(self):
        out = []
        for g in range(self.N):
            if self.mf[g]: out.append(self.mf[g])
            out += self.sal[g] + self.head[g] + self.vec[g]
        return out

def auto_lgkm(lines):
    out = []; q = []
    for t in lines:
        i = hazcheck.parse(t)
        if i is None: out.append(t); continue
        if i.kind == 'wait':
            if i.lgkm is not None:
                while len(q) > i.lgkm: q.pop(0)
            out.append(t); continue
        need = -1
        for k, (pos, x) in enumerate(q):
            if x.w & (i.r | i.w): need = k
        if need >= 0:
            ppos = q[need][0]
            at = len(out)
            if i.kind == 'mfma':
                j = len(out) - 1
                while j > ppos and not out[j].startswith("v_mfma"): j -= 1
                if j > ppos: at = j + 1
            n = sum(1 for (pos, x) in q[need + 1:] if pos < at)
            n = min(n, 13)
            out.insert(at, f"s_waitcnt lgkmcnt({n})")
            q = [(pos + 1 if pos >= at else pos, x) for (pos, x) in q]
            older = [e for e in q if e[0] < at]; newer = [e for e in q if e[0] > at]
            older = older[len(older) - n:] if n else []
            q = older + newer
        if i.kind in ('dsr', 'dsw'): q.append((len(out), i))
        out.append(t)
    return out

def auto_nop(lines, prefix=()):
    lines = list(lines); pre = list(prefix)[-40:]
    done = []
    while True:
        bad = hazcheck.first_short(pre + lines, len(pre))
        if bad is None: return done + lines
        idx, miss = bad
        k = idx - len(pre)
        head = lines[:k] + [f"s_nop {miss - 1}"]
        done += head; pre = (pre + head)[-40:]; lines = lines[k:]

def resolve_vm(lines, history=()):
    q = list(history); out = []
    for t in lines:
        m = re.search(r"vmcnt\(@(\w+)\)", t)
        if m:
            tag = m.group(1)
            last = max(i for i, x in enumerate(q) if x == tag)
            n = len(q) - 1 - last
            assert n <= 63
            t = t.replace(m.group(0), f"vmcnt({n})")
        elif t.startswith("buffer_"):
            q.append(t.split(";")[1].strip() if ";" in t else "-")
        out.append(t)
    return out, q
```

```python
def emit_slow(G, M):
    e = G.e; es = G.es; v = M.v; a = M.a; s = M.s
    from sched import auto_nop
    FK = 40; FV = 42; FD = 46; MX = 48; RAW = 64; Y = 80; LT = 82
    sQB = 62; sTILE = 63; sOFF = M.sT3; sB = M.sT2
    KOFF = 4096; VOFF = 12288 + 4096
    start = len(G.L)
    e(f"s_cmp_eq_u32 {s(M.sFLAGS)}, 0"); e("s_cbranch_scc1 L_done")
    e("s_waitcnt vmcnt(0) lgkmcnt(0)")
    e(f"s_add_u32 {s(sB)}, {s(M.sQBASE)}, {KOFF}")
    for i in range(2): e(f"v_add_u32 {v(FK+i)}, {s(sB)}, {v(M.KA+i)}")
    e(f"s_add_u32 {s(sB)}, {s(M.sQBASE)}, {VOFF}")
    for i in range(4): e(f"v_add_u32 {v(FV+i)}, {s(sB)}, {v(M.VA+i)}")
    e(f"v_and_b32 {v(FD)}, 0x7ff, {v(M.DMAOFF)}")
    G.reset_ora()
    e(f"s_mov_b32 {s(M.sCUR)}, 0")
    G.label("L_s_item")
    e(f"s_bitcmp1_b32 {s(M.sFLAGS)}, {s(M.sCUR)}"); e("s_cbranch_scc0 L_s_next")
    e(f"s_cmp_eq_u32 {s(M.sCUR)}, 0")
    e(f"s_cselect_b32 {s(M.sHEADOFF)}, {s(M.sH0)}, {s(M.sH1)}")
    e(f"s_cselect_b32 {s(M.sROW)}, {s(M.sR0)}, {s(M.sR1)}")
    G.set_srd_base(M.SRD_Q, 4, M.sHEADOFF)
    e(f"s_mov_b32 {s(M.SRD_Q+2)}, {M.HEAD_BYTES}")
    G.setup_out()
    e(f"s_mov_b32 {s(sQB)}, 0")
    G.label("L_s_qb")
    def dma(srd, soff, lds, goff):
        e(f"s_add_u32 m0, {s(M.sQBASE)}, {lds}")
        e(f"s_add_u32 {s(sB)}, {s(soff)}, {goff}")
        e(f"buffer_load_dwordx4 {v(FD)}, {s(srd,4)}, {s(sB)} offen lds")
    for R in range(2):
        for h in range(2): dma(M.SRD_Q, M.sOOFF, h * 12288 + R * 1024, R * 2048 + h * 128)
    e("s_waitcnt vmcnt(0)")
    es(G.q_rd(0, RAW)); e("s_waitcnt lgkmcnt(0)")
    es(G.q_conv(0, RAW, Y))
    def tile(srd, off):
        for rg in range(4):
            for h in range(2): dma(srd, sOFF, off + h * 4096 + rg * 1024, rg * 2048 + h * 128)
    def rdk():
        for kvb in range(2):
            for ks in range(4):
                e(f"ds_read_b128 {a(M.KF + 16*kvb + 4*ks, 4)}, {v(FK + (ks & 1))} offset:{(ks >> 1) * 4096 + kvb * 2048}")
    e(f"v_mov_b32 {v(MX)}, 0xff800000")
    e(f"s_mov_b32 {s(sOFF)}, {s(M.sHEADOFF)}"); e(f"s_mov_b32 {s(sTILE)}, 0")
    G.label("L_s_p1")
    tile(M.SRD_K, KOFF)
    e("s_waitcnt vmcnt(0)"); rdk(); e("s_waitcnt lgkmcnt(0)")
    for kvb in range(2):
        for ks in range(4): e(G.mf_qk(0, kvb, ks, 0, 0, cinit='zero'))
    e("s_nop 7")
    for i in range(4): e(f"v_max3_f32 {v(MX)}, {v(MX)}, {v(M.S_+2*i)}, {v(M.S_+2*i+1)}")
    e(f"s_add_u32 {s(sOFF)}, {s(sOFF)}, 8192"); e(f"s_add_u32 {s(sTILE)}, {s(sTILE)}, 1")
    e(f"s_cmp_lt_u32 {s(sTILE)}, {M.NT}"); e("s_cbranch_scc1 L_s_p1")
    for i in range(1, 4): e(f"v_mov_b32 {v(MX+i)}, {v(MX)}")
    es(G.m_valu(0, MX))
    for i in range(32): e(f"v_mov_b32 {v(M.O_+i)}, 0")
    for i in range(4): e(f"v_accvgpr_write_b32 {a(M.LACC+i)}, 0")
    e(f"s_mov_b32 {s(sOFF)}, {s(M.sHEADOFF)}"); e(f"s_mov_b32 {s(sTILE)}, 0")
    G.label("L_s_p2")
    tile(M.SRD_K, KOFF); tile(M.SRD_V, VOFF)
    e("s_waitcnt vmcnt(0)"); rdk(); e("s_waitcnt lgkmcnt(0)")
    for db in range(8):
        for jh in range(2):
            e(f"ds_read_b64_tr_b16 {a(M.VF + 4*db + 2*jh, 2)}, {v(FV + (db & 3))} offset:{(db >> 2) * 4096 + jh * 2048}")
        if db == 3: e("s_waitcnt lgkmcnt(0)")
    for kvb in range(2):
        for ks in range(4): e(G.mf_qk(0, kvb, ks, 0, 0))
    e("s_nop 7")
    for i in range(8):
        r = M.S_ + i
        if G.fma: e(f"v_fma_f32 {v(r)}, {v(r)}, {s(M.sSCALE)}, {v(M.NEGM)}")
        e(f"v_exp_f32 {v(r)}, {v(r)}")
    e("s_nop 0")
    for i in range(4): e(f"v_cvt_pk_bf16_f32 {v(M.P_+i)}, {v(M.S_+2*i)}, {v(M.S_+2*i+1)}")
    e("s_waitcnt lgkmcnt(0)"); e("s_nop 0")
    for db in range(8): e(G.mf_pv(0, db, 0))
    e(G.mf_sum(0))
    e(f"s_add_u32 {s(sOFF)}, {s(sOFF)}, 8192"); e(f"s_add_u32 {s(sTILE)}, {s(sTILE)}, 1")
    e(f"s_cmp_lt_u32 {s(sTILE)}, {M.NT}"); e("s_cbranch_scc1 L_s_p2")
    e("s_nop 7")
    es(G.slow_epilogue(LT))
    e("s_waitcnt vmcnt(0)")
    e(f"s_add_u32 {s(M.sOOFF)}, {s(M.sOOFF)}, 4096"); e(f"s_add_u32 {s(sQB)}, {s(sQB)}, 1")
    e(f"s_cmp_lt_u32 {s(sQB)}, 6"); e("s_cbranch_scc1 L_s_qb")
    G.label("L_s_next")
    e(f"s_add_u32 {s(M.sCUR)}, {s(M.sCUR)}, 1"); e(f"s_cmp_lt_u32 {s(M.sCUR)}, 2"); e("s_cbranch_scc1 L_s_item")
    G.label("L_done")
    return start, len(G.L)
```

```python
import sys, struct, math
import hazcheck

KN = "standalone__gqa_softmax__near_ridge_kernel"
HEAD_BYTES = 736 * 256
TENSOR_BYTES = 256 * HEAD_BYTES
OOB = 0x7F000000
NT = 23
LDS_Q = 65536
LDS_TOTAL = 163840
LDS_OOR = 0x30000

O_ = 0; S_ = 192; P_ = 208; NEGM = 216
QRA = 240
OWA = 242
KA = 246; VA = 248; DMAOFF = 252; OST = 253; ORA = 254; T0 = 255
QA = 0; KF = 96; VF = 160; ONES = 224; LACC = 228; TRK = 252
SRD_K = 16; SRD_V = 20; SRD_Q = 24; SRD_O = 28
sWAVE = 32; sKV = 33; sPOS = 34; sNEXTKV = 35; sQOFF = 36; sQM0 = 37; sW1K = 38; sCNT = 39
sSCALE = 40
sOOFF = 42; sTHR = 43; sMORE = 44; sTMP = 45
sBAD = 46
sQBASE = 49; sCUR = 50; sFLAGS = 51; sMODE = 52; sHEADOFF = 53; sROW = 54; sT2 = 55
sH0 = 56; sR0 = 57; sH1 = 58; sR1 = 59; sDONE = 60; sT3 = 61
STAMP0 = 64

def v(b, n=1): return f"v{b}" if n == 1 else f"v[{b}:{b+n-1}]"
def a(b, n=1): return f"a{b}" if n == 1 else f"a[{b}:{b+n-1}]"
def s(b, n=1): return f"s{b}" if n == 1 else f"s[{b}:{b+n-1}]"
def f32bits(x): return struct.unpack("<I", struct.pack("<f", x))[0]

class Gen:
    def __init__(self, diag=False, opt=None):
        self.L = []
        self.diag = diag
        self.opt = opt or {}
        self.fma = self.opt.get('fma', 0)
    def pol(self, k, dflt=0):
        x = self.opt.get('p' + k, dflt)
        return (" sc0" if x & 1 else "") + (" sc1" if x & 2 else "") + (" nt" if x & 4 else "")
    def e(self, t): self.L.append("  " + t)
    def es(self, l):
        for t in l: self.e(t)
    def label(self, t): self.L.append(t + ":")
    def stamp(self, idx):
        if self.diag: self.e(f"s_memtime {s(STAMP0 + 2*idx, 2)}")
    def mf_qk(self, qb, kvb, ks, par, sbuf, cinit='negm', dst=None):
        d = (S_ + 8 * sbuf + 4 * kvb) if dst is None else dst
        if ks == 0: c = v(NEGM + 4 * qb, 4) if (cinit == 'negm' and not self.fma) else "0"
        else: c = v(d, 4)
        return f"v_mfma_f32_16x16x32_bf16 {v(d,4)}, {a(KF + 32*par + 16*kvb + 4*ks, 4)}, {a(QA + 16*qb + 4*ks, 4)}, {c}"
    def mf_pv(self, qb, db, par, zero=False, dummy=False):
        d = O_ + 32 * qb + 4 * db
        pb = P_ + 4 * (qb & 1)
        c = "0" if zero else v(d, 4)
        aop = v(pb, 4) if dummy else a(VF + 32 * par + 4 * db, 4)
        return f"v_mfma_f32_16x16x32_bf16 {v(d,4)}, {aop}, {v(pb,4)}, {c}"
    def mf_sum(self, qb, zero=False):
        d = LACC + 4 * qb
        pb = P_ + 4 * (qb & 1)
        return f"v_mfma_f32_16x16x32_bf16 {a(d,4)}, {a(ONES,4)}, {v(pb,4)}, {'0' if zero else a(d,4)}"
    def rd_k(self, slot, par, kvb, ks):
        off = slot * 16384 + (ks >> 1) * 4096 + kvb * 2048
        return f"ds_read_b128 {a(KF + 32*par + 16*kvb + 4*ks, 4)}, {v(KA + (ks & 1))} offset:{off}"
    def rd_v(self, slot, par, db, jh):
        off = slot * 16384 + 8192 + (db >> 2) * 4096 + jh * 2048
        return f"ds_read_b64_tr_b16 {a(VF + 32*par + 4*db + 2*jh, 2)}, {v(VA + (db & 3))} offset:{off}"
    def dma_kv(self, slot, isv, h):
        base = slot * 16384 + isv * 8192 + h * (4096 - 128)
        srd = SRD_V if isv else SRD_K
        off = " offset:128" if h else ""
        return (f"s_add_u32 m0, {s(sW1K)}, {base}",
                f"buffer_load_dwordx4 {v(DMAOFF)}, {s(srd,4)}, {s(sKV)} offen{off}{self.pol('kv',4)} lds")
    def dma_q(self, h):
        off = " offset:128" if h else ""
        m0 = f"s_add_u32 m0, {s(sQM0)}, {12288 - 128}" if h else f"s_mov_b32 m0, {s(sQM0)}"
        return (m0, f"buffer_load_dwordx4 {v(DMAOFF)}, {s(SRD_Q,4)}, {s(sQOFF)} offen{off}{self.pol('q',4)} lds")
    def q_adv(self):
        return [f"s_add_u32 {s(sQM0)}, {s(sQM0)}, 1024", f"s_add_u32 {s(sQOFF)}, {s(sQOFF)}, 2048"]
    def kv_adv(self):
        return [f"s_add_u32 {s(sPOS)}, {s(sPOS)}, 1",
                f"s_add_u32 {s(sKV)}, {s(sKV)}, 8192",
                f"s_cmp_eq_u32 {s(sPOS)}, {NT}",
                f"s_cselect_b32 {s(sKV)}, {OOB}, {s(sKV)}",
                f"s_cmp_eq_u32 {s(sPOS)}, {NT+1}",
                f"s_cselect_b32 {s(sKV)}, {s(sNEXTKV)}, {s(sKV)}"]
    def o_read(self, dst, h, Roff):
        return f"ds_read_b128 {dst}, {v(ORA)} offset:{h * 12288 + Roff * 1024}"
    def o_store(self, src, h, soff, Roff=0, pol='o'):
        off = h * 128 + Roff * 2048
        return f"buffer_store_dwordx4 {src}, {v(OST)}, {s(SRD_O,4)}, {s(soff)} offen offset:{off}{self.pol(pol)}"
    def iteration(self, ph, first=False, last=False, vm_end=None, tail_salu=(), nq=1, extra=()):
        par = ph & 1; rslot = (ph + 1) & 3; wslot = ph & 3
        N = 102
        G = lambda p, i: 17 * p + i
        mf = [None] * N; sal = [[] for _ in range(N)]; vec = [[] for _ in range(N)]
        for p in range(6):
            for kvb in range(2):
                for ks in range(4):
                    mf[G(p, 4 * kvb + ks)] = self.mf_qk(p, kvb, ks, par, p & 1)
            qb = (p - 1) % 6
            vpar = par if p > 0 else par ^ 1
            for db in range(8):
                mf[G(p, 8 + db)] = self.mf_pv(qb, db, vpar, zero=first, dummy=(first and p == 0))
            mf[G(p, 16)] = self.mf_sum(qb, zero=first)
        def gap(p, i):
            p += i // 16; i %= 16
            return G(p, i) if 0 <= p < 6 else None
        fmas = []
        for p in range(-1, 6):
            qb = p % 6
            if p == -1 and first: continue
            for e_ in range(8):
                r = S_ + 8 * (qb & 1) + e_
                g = gap(p, 7 + 2 * e_)
                if g is not None: vec[g].append(f"v_exp_f32 {v(r)}, {v(r)}")
                g = gap(p, 6 + 2 * e_)
                if self.fma and g is not None: fmas.append((g, f"v_fma_f32 {v(r)}, {v(r)}, {s(sSCALE)}, {v(NEGM + 4*qb)}"))
                g = gap(p, 8 + 2 * e_)
                if g is not None and (e_ & 1): vec[g].append(f"v_cvt_pk_bf16_f32 {v(P_ + 4*(qb&1) + e_//2)}, {v(r-1)}, {v(r)}")
        for g, x in fmas: vec[g].append(x)
        rds = []
        if not last:
            rds = [self.rd_k(rslot, par ^ 1, kvb, ks) for kvb in range(2) for ks in range(4)]
            rds += [self.rd_v(rslot, par ^ 1, db, jh) for db in range(8) for jh in range(2)]
            for i, r in enumerate(rds):
                j = 4 * i
                if not self.fma and i >= 20: j = 4 * i - 4 * 4 + 2
                vec[gap(0, j)].insert(0, r)
        dm = []
        hs = (ph + 1) & 1
        adv = [f"s_add_u32 {s(sOOFF)}, {s(sOOFF)}, 2048"] if hs else []
        dm.append(((None, self.o_store(a(TRK, 4), hs, sOOFF, pol='t')), adv))
        if not last:
            for i in range(nq):
                h = (ph + i) & 1 if not first else i & 1
                dm.append((self.dma_q(h), self.q_adv() if h else []))
        for isv in range(2):
            for h in range(2):
                dm.append((self.dma_kv(wslot, isv, h), []))
        dm[-1] = (dm[-1][0], self.kv_adv())
        cand = [G(p, 16) for p in range(5)]
        for g in range(1, N - 16):
            if len(cand) >= len(dm): break
            if len(vec[g]) == 0 and all(abs(g - o) >= 2 for o in cand): cand.append(g)
        g = 8
        while len(cand) < len(dm):
            cand.append(g); g += 17
        cand = sorted(cand)[:len(dm)]
        post = []
        for (g, ((m0, d), adv)) in zip(cand, dm):
            if m0: sal[g - 1].append(m0)
            vec[g].insert(0, d)
            post.append((g + 1, adv))
        for g, adv in post:
            for x in adv:
                while sal[g]: g += 1
                sal[g].append(x); g += 1
        if not last:
            g = gap(2, 10)
            hr = ph & 1
            if hr == 0: vec[gap(2, 6)].append(f"v_add_u32 {v(ORA)}, 1024, {v(ORA)}")
            vec[g].insert(0, self.o_read(a(TRK, 4), hr, 0))
            assert g > cand[0] + 1
        for (g, x) in extra:
            if x.startswith(("ds_", "buffer_")): vec[g].insert(0, x)
            elif x.startswith("s_"): sal[g].append(x)
            else: vec[g].append(x)
        if self.opt.get('itst'):
            vec[0].append(f"s_mov_b32 m0, s62"); vec[1].append("s_nop 3"); vec[1].append(f"v_writelane_b32 {v(T0)}, s94, m0")
            vec[2].append("s_add_u32 s62, s62, 1"); vec[2].append("s_memrealtime s[94:95]")
        g = N - 8
        for x in tail_salu:
            while sal[g]: g += 1
            sal[g].append(x); g += 1
        if vm_end is not None:
            assert not sal[N - 2] and not sal[N - 1]
            sal[N - 2].append(f"s_waitcnt vmcnt({vm_end}) lgkmcnt(0)")
            sal[N - 1].append("s_barrier")
        for p in range(6):
            g0 = G(p, 3); g1 = G(p, 6 if self.fma else 7)
            n = sum(len(sal[g]) + len(vec[g]) for g in range(g0, g1)) + (g1 - g0) + len(sal[g1]) + (len(vec[g1]) - 1 if self.fma else 0)
            g = g0
            while n < 8:
                if not sal[g]: sal[g].append("s_nop 0"); n += 1
                g += 1
                assert g <= g1 + 1
        for g in range(N):
            self.e(mf[g]); self.es(sal[g]); self.es(vec[g])
    def drain(self, par):
        qb = 5
        for e_ in range(5, 8):
            r = S_ + 8 + e_
            if self.fma: self.e(f"v_fma_f32 {v(r)}, {v(r)}, {s(sSCALE)}, {v(NEGM + 4*qb)}")
            self.e(f"v_exp_f32 {v(r)}, {v(r)}")
        self.e("s_nop 0")
        for e_ in (5, 7):
            r = S_ + 8 + e_
            self.e(f"v_cvt_pk_bf16_f32 {v(P_ + 4 + e_//2)}, {v(r-1)}, {v(r)}")
        self.e("s_nop 1")
        return [self.mf_pv(qb, db, par) for db in range(8)] + [self.mf_sum(qb)]
    def e_l(self, qb, l):
        return [f"v_accvgpr_read_b32 {v(l)}, {a(LACC + 4*qb)}",
                f"v_cmp_nge_f32 vcc, {s(sTHR)}, {v(l)}",
                f"v_rcp_f32 {v(l)}, {v(l)}",
                f"s_or_b64 {s(sBAD,2)}, {s(sBAD,2)}, vcc"]
    def e_mul(self, qb, l, db, pk=True):
        o = O_ + 32 * qb + 4 * db
        if pk:
            r = [f"v_pk_mul_f32 {v(o+2*i,2)}, {v(o+2*i,2)}, {v(l,2)} op_sel_hi:[1,0]" for i in range(2)]
        else:
            r = [f"v_mul_f32 {v(o+i)}, {v(l)}, {v(o+i)}" for i in range(4)]
        return r + [f"v_cvt_pk_bf16_f32 {v(o+i)}, {v(o+2*i)}, {v(o+2*i+1)}" for i in range(2)]
    def e_wr(self, qb, db):
        o = O_ + 32 * qb + 4 * db
        return f"ds_write_b64 {v(OWA + (db & 3))}, {v(o,2)} offset:{(db >> 2) * 12288 + qb * 2048}"
    def q_rd(self, qb, t):
        if self.fma:
            return [f"ds_read_b128 {a(QA+16*qb+4*ks,4)}, {v(QRA + (ks&1))} offset:{(ks>>1)*12288 + qb*2048}" for ks in range(4)]
        return [f"ds_read_b128 {v(t+4*ks,4)}, {v(QRA + (ks&1))} offset:{(ks>>1)*12288 + qb*2048}" for ks in range(4)]
    def q_conv(self, qb, t, y):
        if self.fma: return []
        r = []
        for i in range(16):
            x = t + i
            r += [f"v_lshlrev_b32 {v(y)}, 16, {v(x)}", f"v_and_b32 {v(y+1)}, 0xffff0000, {v(x)}",
                  f"v_pk_mul_f32 {v(y,2)}, {v(y,2)}, {s(sSCALE,2)}",
                  f"v_cvt_pk_bf16_f32 {v(x)}, {v(y)}, {v(y+1)}",
                  f"v_accvgpr_write_b32 {a(QA + 16*qb + i)}, {v(x)}"]
        return r
    def m_mfma(self, qb, t): return [self.mf_qk(qb, 0, ks, 0, 0, cinit='zero', dst=t) for ks in range(4)]
    def m_valu(self, qb, t):
        r = [f"v_max3_f32 {v(t)}, {v(t)}, {v(t+1)}, {v(t+2)}", f"v_max_f32 {v(t)}, {v(t)}, {v(t+3)}",
             f"v_mov_b32 {v(t+1)}, {v(t)}", "s_nop 1", f"v_permlane16_swap_b32 {v(t)}, {v(t+1)}", f"v_max_f32 {v(t)}, {v(t)}, {v(t+1)}",
             f"v_mov_b32 {v(t+1)}, {v(t)}", "s_nop 1", f"v_permlane32_swap_b32 {v(t)}, {v(t+1)}"]
        if self.fma:
            r += [f"v_min_f32 {v(t)}, -{v(t)}, -{v(t+1)}", f"v_mul_f32 {v(NEGM+4*qb)}, {s(sSCALE)}, {v(t)}"]
        else:
            r += [f"v_min_f32 {v(NEGM+4*qb+i)}, -{v(t)}, -{v(t+1)}" for i in range(4)]
        return r
    def slow_epilogue(self, l):
        r = self.e_l(0, l)
        for db in range(8): r += self.e_mul(0, l, db)
        r += [self.e_wr(0, db) for db in range(8)] + ["s_waitcnt lgkmcnt(0)"]
        r += [self.o_read(v(O_ + 4 * c, 4), c & 1, c >> 1) for c in range(4)] + ["s_waitcnt lgkmcnt(0)"]
        r += [self.o_store(v(O_ + 4 * c, 4), c & 1, sOOFF, Roff=c >> 1) for c in range(4)]
        return r
    def rd_k0(self): return [self.rd_k(0, 0, kvb, ks) for kvb in range(2) for ks in range(4)]
    def rd_v0(self): return [self.rd_v(0, 0, db, jh) for db in range(8) for jh in range(2)]
    def init_item(self):
        for i in range(4): self.e(f"v_mov_b32 {v(P_+4+i)}, 0")
    def set_srd_base(self, srd, ptr, off):
        self.e(f"s_add_u32 {s(srd)}, {s(ptr)}, {s(off)}")
        self.e(f"s_addc_u32 {s(srd+1)}, {s(ptr+1)}, 0")
    def setup_qdma(self, hoff, row):
        self.set_srd_base(SRD_Q, 4, hoff)
        self.e(f"s_mul_i32 {s(sTMP)}, {s(sWAVE)}, 88")
        self.e(f"s_add_u32 {s(sTMP)}, {s(sTMP)}, {s(row)}")
        self.e(f"s_lshl_b32 {s(sQOFF)}, {s(sTMP)}, 8")
        self.e(f"s_mov_b32 {s(sQM0)}, {s(sQBASE)}")
    def setup_out(self):
        self.set_srd_base(SRD_O, 10, sHEADOFF)
        self.e(f"s_mov_b32 {s(SRD_O+2)}, {HEAD_BYTES}")
        self.e(f"s_mul_i32 {s(sTMP)}, {s(sWAVE)}, 96")
        self.e(f"s_add_u32 {s(sTMP)}, {s(sTMP)}, {s(sROW)}")
        self.e(f"s_lshl_b32 {s(sOOFF)}, {s(sTMP)}, 8")
    def reset_ora(self):
        self.e(f"v_and_b32 {v(ORA)}, 0x3ff, {v(ORA)}")
        self.e(f"v_add_u32 {v(ORA)}, {s(sQBASE)}, {v(ORA)}")
    def emit_dma(self, pair):
        self.e(pair[0]); self.e("s_nop 0"); self.e(pair[1])
    def dma_tile(self, slot, which=(0, 1), adv=True):
        for isv in which:
            for h in range(2): self.emit_dma(self.dma_kv(slot, isv, h))
        if adv: self.es(self.kv_adv())
    def dma_qblock(self):
        for R in range(2):
            for h in range(2): self.emit_dma(self.dma_q(h))
            self.es(self.q_adv())
    def flag_item(self):
        e = self.e
        e(f"s_cmp_lg_u64 {s(sBAD,2)}, 0")
        e(f"s_cselect_b32 {s(sTMP)}, 1, 0")
        e(f"s_lshl_b32 {s(sTMP)}, {s(sTMP)}, {s(sCUR)}")
        e(f"s_or_b32 {s(sFLAGS)}, {s(sFLAGS)}, {s(sTMP)}")
        e(f"s_mov_b64 {s(sBAD,2)}, 0")

    def build(self):
        e = self.e; es = self.es
        e("s_cmp_ge_u32 s2, 256"); e("s_cbranch_scc1 L_end")
        e("s_load_dwordx4 s[4:7], s[0:1], 0"); e("s_load_dwordx4 s[8:11], s[0:1], 16")
        if self.diag:
            e("s_load_dwordx4 s[12:15], s[0:1], 32"); e(f"s_memrealtime {s(96,2)}")
        self.stamp(0)
        e("v_lshrrev_b32 v1, 6, v0"); e("v_and_b32 v2, 63, v0")
        e(f"v_readfirstlane_b32 {s(sWAVE)}, v1")
        if self.opt.get('pf'):
            e("s_getpc_b64 s[62:63]")
            self.label("L_pc")
            e("s_lshr_b32 s3, s2, 3"); e(f"s_and_b32 s3, s3, {self.opt['pf'] - 1}"); e("s_lshl_b32 s3, s3, 12")
            e("v_lshlrev_b32 v3, 4, v0"); e("v_add_u32 v3, s3, v3")
            e("v_min_u32 v3, L_end-L_pc-16, v3")
            e("global_load_dwordx4 v[188:191], v3, s[62:63]")
        e("v_lshrrev_b32 v5, 3, v2")
        e("v_and_b32 v6, 6, v5")
        e("v_and_b32 v7, 7, v2")
        e("v_xor_b32 v6, v6, v7")
        e("v_lshlrev_b32 v6, 4, v6")
        e("v_lshrrev_b32 v8, 3, v0")
        e(f"v_lshl_add_u32 {v(DMAOFF)}, v8, 8, v6")
        e(f"s_lshl_b32 {s(sW1K)}, {s(sWAVE)}, 10")
        e(f"s_mul_i32 {s(sQBASE)}, {s(sWAVE)}, 24576")
        e(f"s_add_u32 {s(sQBASE)}, {s(sQBASE)}, {LDS_Q}")
        e(f"s_and_b32 {s(sTMP)}, s2, 7"); e(f"s_lshl_b32 {s(sTMP)}, {s(sTMP)}, 5")
        e(f"s_lshr_b32 {s(sT2)}, s2, 4"); e(f"s_add_u32 {s(sTMP)}, {s(sTMP)}, {s(sT2)}")
        e(f"s_mul_i32 {s(sH0)}, {s(sTMP)}, {HEAD_BYTES}")
        e(f"s_add_u32 {s(sH1)}, {s(sH0)}, {16 * HEAD_BYTES}")
        e(f"s_bfe_u32 {s(sT2)}, s2, 0x10003")
        e(f"s_mul_i32 {s(sR0)}, {s(sT2)}, 384")
        e(f"s_sub_u32 {s(sR1)}, 384, {s(sR0)}")
        for srd in (SRD_K, SRD_V):
            e(f"s_mov_b32 {s(srd+2)}, {TENSOR_BYTES}"); e(f"s_mov_b32 {s(srd+3)}, 0x20000")
        e(f"s_mov_b32 {s(SRD_Q+2)}, {HEAD_BYTES}"); e(f"s_mov_b32 {s(SRD_Q+3)}, 0x20000")
        e(f"s_mov_b32 {s(SRD_O+2)}, 0"); e(f"s_mov_b32 {s(SRD_O+3)}, 0x20000")
        e(f"s_mov_b32 {s(sHEADOFF)}, {s(sH0)}"); e(f"s_mov_b32 {s(sROW)}, {s(sR0)}")
        e(f"s_mov_b32 {s(sNEXTKV)}, {s(sH1)}"); e(f"s_mov_b32 {s(sMORE)}, 1")
        e(f"s_mov_b32 {s(sKV)}, {s(sHEADOFF)}"); e(f"s_mov_b32 {s(sPOS)}, 0")
        e("s_waitcnt lgkmcnt(0)")
        for srd, ptr in ((SRD_K, 6), (SRD_V, 8), (SRD_O, 10)):
            e(f"s_mov_b32 {s(srd)}, {s(ptr)}"); e(f"s_mov_b32 {s(srd+1)}, {s(ptr+1)}")
        self.dma_tile(0, which=(0,), adv=False)
        self.setup_qdma(sHEADOFF, sROW)
        for qb in range(3): self.dma_qblock()
        e("v_and_b32 v3, 15, v2")
        e("v_lshrrev_b32 v4, 4, v2")
        e("v_xor_b32 v6, v5, v7"); e("v_lshlrev_b32 v6, 4, v6")
        e(f"v_lshl_add_u32 {v(OST)}, v5, 8, v6")
        e(f"v_lshlrev_b32 {v(ORA)}, 4, v2")
        e("v_and_b32 v5, 6, v3"); e("v_xor_b32 v6, v4, v5"); e("v_lshlrev_b32 v6, 4, v6")
        e(f"v_lshl_add_u32 {v(KA)}, v3, 7, v6")
        e(f"v_xor_b32 {v(KA+1)}, 64, {v(KA)}")
        e(f"v_add_u32 {v(QRA)}, {s(sQBASE)}, {v(KA)}"); e(f"v_add_u32 {v(QRA+1)}, {s(sQBASE)}, {v(KA+1)}")
        e("v_lshrrev_b32 v5, 2, v2"); e("v_and_b32 v6, 6, v5"); e("v_lshlrev_b32 v6, 4, v6")
        e("v_and_b32 v7, 3, v2"); e("v_lshlrev_b32 v7, 3, v7"); e("v_lshl_add_u32 v7, v5, 7, v7")
        e(f"v_add_u32 {v(VA)}, v6, v7")
        for i in range(1, 4): e(f"v_xor_b32 {v(VA+i)}, {32*i}, {v(VA)}")
        e("v_lshrrev_b32 v5, 1, v4"); e("v_and_b32 v6, 7, v3"); e("v_xor_b32 v5, v5, v6"); e("v_lshlrev_b32 v5, 4, v5")
        e("v_and_b32 v6, 1, v4"); e("v_lshl_add_u32 v5, v6, 3, v5"); e("v_lshl_add_u32 v5, v3, 7, v5")
        e(f"v_add_u32 {v(OWA)}, {s(sQBASE)}, v5")
        for i in range(1, 4): e(f"v_xor_b32 {v(OWA+i)}, {32*i}, {v(OWA)}")
        self.reset_ora()
        e("v_mov_b32 v5, 0x3f803f80")
        for i in range(4): e(f"v_accvgpr_write_b32 {a(ONES+i)}, v5")
        cbits = hex(f32bits(math.log2(math.e) / math.sqrt(128.0)))
        e(f"s_mov_b32 {s(sSCALE)}, {cbits}"); e(f"s_mov_b32 {s(sSCALE+1)}, {cbits}")
        e(f"s_mov_b32 {s(sTHR)}, {hex(f32bits(2.0**64))}")
        e(f"s_mov_b64 {s(sBAD,2)}, 0"); e(f"s_mov_b32 {s(sFLAGS)}, 0"); e(f"s_mov_b32 {s(sCUR)}, 0"); e(f"s_mov_b32 {s(sOOFF)}, 0")
        if self.opt.get('itst'): e("s_mov_b32 s62, 0"); e(f"v_mov_b32 {v(T0)}, 0"); e("s_mov_b32 s94, s96")
        self.init_item()
        self.dma_qblock()
        e("s_waitcnt vmcnt(16)"); e("s_barrier")
        es(self.rd_k0())
        groups = [lambda: self.dma_qblock(), lambda: self.dma_qblock(),
                  lambda: (self.dma_tile(0, which=(1,)), self.dma_tile(1, which=(0,), adv=False)),
                  lambda: (self.dma_tile(1, which=(1,)), self.dma_tile(2, which=(0,), adv=False)),
                  lambda: (self.dma_tile(2, which=(1,)), self.dma_tile(3, which=(0,), adv=False)),
                  lambda: self.dma_tile(3, which=(1,))]
        for qb in range(6):
            e("s_waitcnt vmcnt(12)")
            t = O_ + 32 * qb
            es(self.q_rd(qb, t))
            groups[qb]()
            if qb > 0: es(self.m_valu(qb - 1, O_ + 32 * (qb - 1) + 20))
            e("s_waitcnt lgkmcnt(0)")
            es(self.q_conv(qb, t, t + 16))
            e("s_nop 1")
            es(self.m_mfma(qb, t + 20))
        self.stamp(1)
        e("s_waitcnt vmcnt(12)"); e("s_barrier")
        es(self.rd_v0())
        self.setup_qdma(sH1, sR1)
        es(self.m_valu(5, O_ + 32 * 5 + 20))
        e("s_waitcnt vmcnt(8) lgkmcnt(0)"); e("s_barrier")
        self.label("L_item")
        self.stamp(2)
        if self.diag: e("s_memrealtime s[90:91]")
        i0 = len(self.L)
        self.iteration(0, first=True, vm_end=12, nq=3, tail_salu=[f"s_mov_b32 {s(sCNT)}, 6"])
        self.label("L_loop")
        l0 = len(self.L)
        self.iteration(1, vm_end=12, tail_salu=[f"s_sub_u32 {s(sCNT)}, {s(sCNT)}, 1", f"s_cmp_eq_u32 {s(sCNT)}, 0"])
        e("s_cbranch_scc1 L_last")
        l1 = len(self.L)
        self.iteration(2, vm_end=12)
        self.iteration(3, vm_end=12)
        self.iteration(0, vm_end=12)
        e("s_branch L_loop")
        l2 = len(self.L)
        self.label("L_last")
        self.iteration(2, last=True, vm_end=9, tail_salu=[f"s_cmp_eq_u32 {s(sMORE)}, 0"])
        e("s_cbranch_scc1 L_final")
        lb = len(self.L)
        es(self.q_rd(0, NEGM))
        if self.fma:
            for qb in range(1, 6): es(self.q_rd(qb, 0))
        pv = self.drain(0)
        es(pv)
        self.stamp(3)
        if self.diag: e("s_memrealtime s[92:93]")
        es(self.rd_k0())
        self.dma_tile(3)
        self.setup_out()
        self.reset_ora()
        Lr = S_
        Y = S_ + 12
        e("s_waitcnt lgkmcnt(8)")
        es(self.q_conv(0, NEGM, Y))
        es(self.rd_v0())
        tq = {1: O_, 2: O_ + 16, 3: O_ + 32, 4: O_ + 48, 5: O_ + 64}
        for qb in range(6):
            l = Lr + 2 * (qb & 1)
            es(self.e_l(qb, l))
            for db in range(8): es(self.e_mul(qb, l, db))
            if qb > 0 and not self.fma: e("s_waitcnt lgkmcnt(0)")
            for db in range(8): e(self.e_wr(qb, db))
            if not self.fma:
                nxt = {0: (1, 2), 1: (3, 4), 2: (5,)}.get(qb, ())
                if nxt: e("s_waitcnt lgkmcnt(0)")
                for n_ in nxt: es(self.q_rd(n_, tq[n_]))
                if qb > 0: es(self.q_conv(qb, tq[qb], Y))
        self.flag_item()
        self.stamp(4)
        e("s_waitcnt lgkmcnt(0)")
        mt = O_ + 96
        e(self.o_read(v(O_ + 128, 4), 0, 0)); e(self.o_read(a(TRK, 4), 1, 0))
        for qb in range(6): es(self.m_mfma(qb, mt + 4 * qb))
        e(f"s_mov_b32 {s(sMORE)}, 0"); e(f"s_mov_b32 {s(sCUR)}, 1")
        e(f"s_mov_b32 {s(sHEADOFF)}, {s(sH1)}"); e(f"s_mov_b32 {s(sROW)}, {s(sR1)}")
        e(f"s_mov_b32 {s(sNEXTKV)}, {OOB}"); e(f"s_mov_b32 {s(sPOS)}, 4")
        e(f"s_mov_b32 {s(SRD_Q+2)}, 0"); e(f"s_mov_b32 {s(sQM0)}, {LDS_OOR}")
        e("s_waitcnt lgkmcnt(0)")
        e(self.o_store(v(O_ + 128, 4), 0, sOOFF, pol='t'))
        for qb in range(6): es(self.m_valu(qb, mt + 4 * qb))
        self.init_item()
        e("s_waitcnt vmcnt(10) lgkmcnt(0)"); e("s_barrier")
        if self.diag:
            e("s_waitcnt lgkmcnt(0)")
            for i in range(4, 10): e(f"s_mov_b32 {s(STAMP0 + 6 + i)}, {s(STAMP0 + i)}")
        e("s_branch L_item")
        l4 = len(self.L)
        self.label("L_final")
        pv = self.drain(0)
        es(pv)
        self.stamp(3)
        if self.diag: e("s_memrealtime s[92:93]")
        self.setup_out()
        self.reset_ora()
        for qb in range(7):
            if qb < 6:
                l = Lr + 2 * (qb & 1)
                es(self.e_l(qb, l))
                for db in range(8):
                    es(self.e_mul(qb, l, db))
            if qb > 0:
                p = qb - 1
                e("s_waitcnt lgkmcnt(0)")
                for c in range(4):
                    e(self.o_store(v(O_ + 32 * p + 4 * c, 4), c & 1, sOOFF, Roff=c >> 1))
                e(f"s_add_u32 {s(sOOFF)}, {s(sOOFF)}, 4096")
            if qb < 6:
                for db in range(8): e(self.e_wr(qb, db))
                e("s_waitcnt lgkmcnt(0)")
                for c in range(4):
                    e(self.o_read(v(O_ + 32 * qb + 4 * c, 4), c & 1, 2 * qb + (c >> 1)))
        self.flag_item()
        self.stamp(4)
        l5 = len(self.L)
        self.label("L_fin")
        import slowpath
        sp0, sp1 = slowpath.emit_slow(self, sys.modules[__name__])
        if self.diag:
            e("s_waitcnt vmcnt(0)")
            self.stamp(8)
            e(f"s_memrealtime {s(98,2)}")
            e("s_waitcnt lgkmcnt(0)")
            e(f"s_mov_b32 {s(STAMP0+18)}, s96"); e(f"s_mov_b32 {s(STAMP0+19)}, s98")
            e("s_mov_b32 s20, s14"); e("s_mov_b32 s21, s15"); e("s_mov_b32 s22, 0x10000000"); e("s_mov_b32 s23, 0x20000")
            e("v_mov_b32 v0, 0")
            for i in range(20): e(f"v_writelane_b32 v0, {s(STAMP0+i)}, {i}")
            e("s_sub_u32 s92, s92, s90"); e("v_writelane_b32 v0, s92, 63")
            e(f"s_lshl_b32 s3, s2, 2"); e(f"s_add_u32 s3, s3, {s(sWAVE)}"); e("s_lshl_b32 s3, s3, 8")
            e("v_mbcnt_lo_u32_b32 v1, -1, 0"); e("v_mbcnt_hi_u32_b32 v1, -1, v1"); e("v_lshlrev_b32 v1, 2, v1")
            e("buffer_store_dword v0, v1, s[20:23], s3 offen")
            if self.opt.get('itst'):
                e("s_add_u32 s3, s3, 0x100000"); e(f"buffer_store_dword {v(T0)}, v1, s[20:23], s3 offen")
        self.label("L_end")
        e("s_endpgm")
        L = self.L
        errs = hazcheck.check(L[:l2] + L[l0:l1] + L[l2:l4] + L[i0:l1] + L[l2:lb] + L[l4:l5], "path")
        errs += hazcheck.check(L[sp0:sp1] + L[sp0:sp1], "slow")
        return errs
    def text(self):
        hdr = open("standalone__gqa_softmax__near_ridge.s.ref").read().split("; Override")[0]
        out = hdr + f"; @launch grid=(256,1,1) block=(256,1,1) lds={LDS_TOTAL}\n"
        out += f'.amdgcn_target "amdgcn-amd-amdhsa--gfx950"\n.text\n.globl {KN}\n.p2align 8\n.type {KN},@function\n{KN}:\n'
        out += "\n".join(self.L) + "\n"
        out += f""".section .rodata,"a"
.p2align 6
.amdhsa_kernel {KN}
  .amdhsa_next_free_vgpr 512
  .amdhsa_next_free_sgpr 102
  .amdhsa_accum_offset 256
  .amdhsa_group_segment_fixed_size 0
  .amdhsa_kernarg_size 48
  .amdhsa_user_sgpr_count 2
  .amdhsa_user_sgpr_kernarg_segment_ptr 1
  .amdhsa_system_sgpr_workgroup_id_x 1
.end_amdhsa_kernel
"""
        return out

if __name__ == "__main__":
    import argparse
    ap = argparse.ArgumentParser()
    ap.add_argument("-o", default="k.s"); ap.add_argument("--diag", action="store_true"); ap.add_argument("--opt", default="")
    A = ap.parse_args()
    opt = {}
    for kv in A.opt.split(","):
        if kv:
            k_, _, v_ = kv.partition("=")
            opt[k_] = int(v_) if v_ else 1
    g = Gen(diag=A.diag, opt=opt)
    errs = g.build()
    for x in errs[:20]: print(x)
    print("hazard errors:", len(errs))
    if opt.get('rt'): g.L = [x.replace("s_memtime", "s_memrealtime") for x in g.L]
    open(A.o, "w").write(g.text())
```

```python
import sys, struct, math
import hazcheck
from sched import Region, auto_lgkm, auto_nop, resolve_vm

KN = "standalone__gqa_softmax__near_ridge_kernel"
HEAD_BYTES = 736 * 256
TENSOR_BYTES = 256 * HEAD_BYTES
NT = 23
LDS_Q = 65536
LDS_TOTAL = 163840

O_ = 0; S_ = 192; P_ = 208; NEGM = 216
CV = 240
OWA = 240
QRA = 244
KA = 246; VA = 248; DMAOFF = 252; OST = 253; T0 = 254; ORA = 255
QA = 0; KF = 96; VF = 160; ONES = 224; LACC = 228; TRK = 252
SRD_K = 16; SRD_V = 20; SRD_Q = 24; SRD_O = 28
sWAVE = 32; sKV = 33; sPOS = 34; sQOFF = 36; sQM0 = 37; sW1K = 38
sSCALE = 40
sOOFF = 42; sTHR = 43; sPAD = 44; sTMP = 45
sBAD = 46
sQBASE = 49; sCUR = 50; sFLAGS = 51; sHEADOFF = 53; sROW = 54; sT2 = 55
sH0 = 56; sR0 = 57; sH1 = 58; sR1 = 59; sPAD1 = 60; sT3 = 61
STAMP0 = 64

def v(b, n=1): return f"v{b}" if n == 1 else f"v[{b}:{b+n-1}]"
def a(b, n=1): return f"a{b}" if n == 1 else f"a[{b}:{b+n-1}]"
def s(b, n=1): return f"s{b}" if n == 1 else f"s[{b}:{b+n-1}]"
def f32bits(x): return struct.unpack("<I", struct.pack("<f", x))[0]

class Gen:
    def __init__(self, diag=False, opt=None):
        self.L = []; self.diag = diag; self.opt = opt or {}
        self.fma = 0; self.xn = []
    def pol(self, k, dflt=0):
        x = self.opt.get('p' + k, dflt)
        return (" sc0" if x & 1 else "") + (" sc1" if x & 2 else "") + (" nt" if x & 4 else "")
    def e(self, t): self.L.append("  " + t)
    def es(self, l):
        for t in l: self.e(t)
    def label(self, t): self.L.append(t + ":")
    def st(self, idx):
        return [f"s_memtime {s(STAMP0 + 2*idx, 2)}"] if self.diag else []
    def cap(self, f):
        sv = self.L; self.L = []; f(); r = [x.strip() for x in self.L]; self.L = sv; return r
    def mf_qk(self, qb, kvb, ks, par, sbuf, cinit='negm', dst=None):
        d = (S_ + 8 * sbuf + 4 * kvb) if dst is None else dst
        if ks == 0: c = v(NEGM + 4 * qb, 4) if cinit == 'negm' else "0"
        else: c = v(d, 4)
        return f"v_mfma_f32_16x16x32_bf16 {v(d,4)}, {a(KF + 32*par + 16*kvb + 4*ks, 4)}, {a(QA + 16*qb + 4*ks, 4)}, {c}"
    def mf_pv(self, qb, db, par, zero=False):
        d = O_ + 32 * qb + 4 * db
        return f"v_mfma_f32_16x16x32_bf16 {v(d,4)}, {a(VF + 32*par + 4*db, 4)}, {v(P_ + 4*(qb&1),4)}, {'0' if zero else v(d,4)}"
    def mf_sum(self, qb, zero=False):
        d = LACC + 4 * qb
        return f"v_mfma_f32_16x16x32_bf16 {a(d,4)}, {a(ONES,4)}, {v(P_ + 4*(qb&1),4)}, {'0' if zero else a(d,4)}"
    def rdk(self, p):
        slot = p & 3; par = p & 1
        return [f"ds_read_b128 {a(KF + 32*par + 16*kvb + 4*ks, 4)}, {v(KA + (ks & 1))} offset:{slot * 16384 + (ks >> 1) * 4096 + kvb * 2048}"
                for kvb in range(2) for ks in range(4)]
    def rdv(self, p):
        slot = p & 3; par = p & 1
        return [f"ds_read_b64_tr_b16 {a(VF + 32*par + 4*db + 2*jh, 2)}, {v(VA + (db & 3))} offset:{slot * 16384 + 8192 + (db >> 2) * 4096 + jh * 2048}"
                for db in range(8) for jh in range(2)]
    def kv_adv(self, jump):
        r = [f"s_add_u32 {s(sPOS)}, {s(sPOS)}, 1", f"s_add_u32 {s(sKV)}, {s(sKV)}, 8192"]
        if jump: r += [f"s_cmp_eq_u32 {s(sPOS)}, {NT}", f"s_cselect_b32 {s(sKV)}, {s(sH1)}, {s(sKV)}"]
        return r
    def l_kv(self, p, isv, tag, adv=False, jump=False):
        r = []
        for h in range(2):
            base = (p & 3) * 16384 + isv * 8192 + h * (4096 - 128)
            off = " offset:128" if h else ""
            r.append([f"s_add_u32 m0, {s(sW1K)}, {base}",
                      f"buffer_load_dwordx4 {v(DMAOFF)}, {s(SRD_V if isv else SRD_K,4)}, {s(sKV)} offen{off}{self.pol('kv',4)} lds ; {tag}", []])
        if adv: r[-1][2] = self.kv_adv(jump)
        return r
    def l_t(self, p, tag=None, jump=False):
        tag = tag or f"T{p}"
        return self.l_kv(p, 0, tag) + self.l_kv(p, 1, tag, adv=True, jump=jump)
    def l_q(self, n, tag, h0=0):
        r = []
        for i in range(n):
            h = (h0 + i) & 1
            off = " offset:128" if h else ""
            m0 = f"s_add_u32 m0, {s(sQM0)}, {12288 - 128}" if h else f"s_mov_b32 m0, {s(sQM0)}"
            adv = [f"s_add_u32 {s(sQM0)}, {s(sQM0)}, 1024", f"s_add_u32 {s(sQOFF)}, {s(sQOFF)}, 2048"] if h else []
            r.append([m0, f"buffer_load_dwordx4 {v(DMAOFF)}, {s(SRD_Q,4)}, {s(sQOFF)} offen{off}{self.pol('q',4)} lds ; {tag}", adv])
        return r
    def flat(self, l):
        out = []
        for m0, d, adv in l: out += ([m0, "s_nop 0"] if m0 else []) + [d] + list(adv)
        return out
    def o_read(self, dst, h, Roff): return f"ds_read_b128 {dst}, {v(ORA)} offset:{h * 12288 + Roff * 1024}"
    def o_store(self, src, h, soff, Roff=0, pol='o'):
        return f"buffer_store_dwordx4 {src}, {v(OST)}, {s(SRD_O,4)}, {s(soff)} offen offset:{h * 128 + Roff * 2048}{self.pol(pol, 4)}"
    def cv_chunk(self, h, Roff):
        ops = []
        for i in range(4):
            x = CV + i
            ops += [f"v_lshlrev_b32 {v(T0)}, 16, {v(x)}", f"v_and_b32 {v(x)}, 0xffff0000, {v(x)}",
                    f"v_mul_f32 {v(T0)}, {s(sSCALE)}, {v(T0)}", f"v_mul_f32 {v(x)}, {s(sSCALE)}, {v(x)}",
                    f"v_cvt_pk_bf16_f32 {v(x)}, {v(T0)}, {v(x)}"]
        return self.o_read(v(CV, 4), h, Roff), ops, f"ds_write_b128 {v(ORA)}, {v(CV,4)} offset:{h * 12288 + Roff * 1024}"
    def e_l(self, qb, l):
        return [f"v_accvgpr_read_b32 {v(l)}, {a(LACC + 4*qb)}", f"v_cmp_nge_f32 vcc, {s(sTHR)}, {v(l)}",
                f"v_rcp_f32 {v(l)}, {v(l)}", f"s_or_b64 {s(sBAD,2)}, {s(sBAD,2)}, vcc"]
    def e_mul(self, qb, l, db, pk=True):
        o = O_ + 32 * qb + 4 * db
        if pk: r = [f"v_pk_mul_f32 {v(o+2*i,2)}, {v(o+2*i,2)}, {v(l,2)} op_sel_hi:[1,0]" for i in range(2)]
        else: r = [f"v_mul_f32 {v(o+i)}, {v(l)}, {v(o+i)}" for i in range(4)]
        return r + [f"v_cvt_pk_bf16_f32 {v(o+i)}, {v(o+2*i)}, {v(o+2*i+1)}" for i in range(2)]
    def e_wr(self, qb, db):
        return f"ds_write_b64 {v(OWA + (db & 3))}, {v(O_ + 32*qb + 4*db,2)} offset:{(db >> 2) * 12288 + qb * 2048}"
    def e_core(self, qb, pk):
        r = self.e_l(qb, T0)
        for db in range(8):
            r += self.e_mul(qb, T0, db, pk=pk)
            if db: r.append(self.e_wr(qb, db - 1))
        return r + [self.e_wr(qb, 7)]
    def e_out(self, qb):
        o = O_ + 32 * qb
        rd = [self.o_read(v(o + 4 + 8 * c, 4), c & 1, 2 * qb + (c >> 1)) for c in range(4)]
        st = [self.o_store(v(o + 4 + 8 * c, 4), c & 1, sOOFF, Roff=c >> 1) for c in range(4)]
        return rd, st, f"s_add_u32 {s(sOOFF)}, {s(sOOFF)}, 4096"
    def slow_epilogue(self, l):
        rd, st, _ = self.e_out(0)
        return self.e_core(0, True) + rd + ["s_waitcnt lgkmcnt(0)"] + st
    def q_rd(self, qb, t, direct=False):
        return [f"ds_read_b128 {a(QA+16*qb+4*ks,4) if direct else v(t+4*ks,4)}, {v(QRA + (ks&1))} offset:{(ks>>1)*12288 + qb*2048}" for ks in range(4)]
    def q_conv(self, qb, t, y):
        r = []
        for i in range(16):
            x = t + i
            r += [f"v_lshlrev_b32 {v(y)}, 16, {v(x)}", f"v_and_b32 {v(y+1)}, 0xffff0000, {v(x)}",
                  f"v_pk_mul_f32 {v(y,2)}, {v(y,2)}, {s(sSCALE,2)}",
                  f"v_cvt_pk_bf16_f32 {v(x)}, {v(y)}, {v(y+1)}", f"v_accvgpr_write_b32 {a(QA + 16*qb + i)}, {v(x)}"]
        return r
    def m_mfma(self, qb, par): return [self.mf_qk(qb, 0, ks, par, 0, cinit='zero', dst=NEGM + 4 * qb) for ks in range(4)]
    def m_valu(self, qb, t=None, pad=None):
        n = NEGM + 4 * qb
        t = n if t is None else t
        r = [f"v_max3_f32 {v(t)}, {v(t)}, {v(t+1)}, {v(t+2)}", f"v_max_f32 {v(t)}, {v(t)}, {v(t+3)}",
             f"v_mov_b32 {v(t+1)}, {v(t)}", "s_nop 1", f"v_permlane16_swap_b32 {v(t)}, {v(t+1)}", f"v_max_f32 {v(t)}, {v(t)}, {v(t+1)}",
             f"v_mov_b32 {v(t+1)}, {v(t)}", "s_nop 1", f"v_permlane32_swap_b32 {v(t)}, {v(t+1)}"]
        if pad is not None and qb >= 4: r.append(f"v_min3_f32 {v(n+3)}, -{v(t)}, -{v(t+1)}, {s(pad)}")
        else: r.append(f"v_min_f32 {v(n+3)}, -{v(t)}, -{v(t+1)}")
        return r + [f"v_mov_b32 {v(n+i)}, {v(n+3)}" for i in range(3)]
    def set_srd_base(self, srd, ptr, off):
        self.e(f"s_add_u32 {s(srd)}, {s(ptr)}, {s(off)}"); self.e(f"s_addc_u32 {s(srd+1)}, {s(ptr+1)}, 0")
    def setup_qdma(self, hoff, row):
        self.set_srd_base(SRD_Q, 4, hoff)
        self.e(f"s_mul_i32 {s(sTMP)}, {s(sWAVE)}, 88"); self.e(f"s_add_u32 {s(sTMP)}, {s(sTMP)}, {s(row)}")
        self.e(f"s_lshl_b32 {s(sQOFF)}, {s(sTMP)}, 8"); self.e(f"s_mov_b32 {s(sQM0)}, {s(sQBASE)}")
    def setup_out(self, hoff=sHEADOFF, row=sROW):
        self.set_srd_base(SRD_O, 10, hoff)
        self.e(f"s_mul_i32 {s(sTMP)}, {s(sWAVE)}, 96"); self.e(f"s_add_u32 {s(sTMP)}, {s(sTMP)}, {s(row)}")
        self.e(f"s_lshl_b32 {s(sOOFF)}, {s(sTMP)}, 8")
    def reset_ora(self):
        self.e(f"v_and_b32 {v(ORA)}, 0x3ff, {v(ORA)}"); self.e(f"v_add_u32 {v(ORA)}, {s(sQBASE)}, {v(ORA)}")
    def mk_owa(self):
        r = [f"v_bfe_u32 {v(OWA+1)}, {v(ORA)}, 4, 4",
             f"v_bfe_u32 {v(OWA+2)}, {v(ORA)}, 9, 1",
             f"v_and_b32 {v(OWA+3)}, 7, {v(OWA+1)}",
             f"v_xor_b32 {v(OWA+2)}, {v(OWA+2)}, {v(OWA+3)}",
             f"v_lshlrev_b32 {v(OWA+2)}, 4, {v(OWA+2)}",
             f"v_lshl_add_u32 {v(OWA+1)}, {v(OWA+1)}, 7, {v(OWA+2)}",
             f"v_bfe_u32 {v(OWA+2)}, {v(ORA)}, 8, 1",
             f"v_lshl_add_u32 {v(OWA+1)}, {v(OWA+2)}, 3, {v(OWA+1)}",
             f"v_add_u32 {v(OWA)}, {s(sQBASE)}, {v(OWA+1)}"]
        return r + [f"v_xor_b32 {v(OWA+i)}, {32*i}, {v(OWA)}" for i in range(1, 4)]
    def flag_item(self, bit):
        return [f"s_cmp_lg_u64 {s(sBAD,2)}, 0", f"s_cselect_b32 {s(sTMP)}, {1 << bit}, 0",
                f"s_or_b32 {s(sFLAGS)}, {s(sFLAGS)}, {s(sTMP)}", f"s_mov_b64 {s(sBAD,2)}, 0"]
    def cells_region(self, cells, pending=None, drain=False, pre=None):
        seq = list(cells) + ([None] if drain else [])
        pre = pre or {}
        spine = []; base = []
        prev = pending
        for i, c in enumerate(seq):
            spine += pre.get(i, [])
            base.append(len(spine))
            spine += [self.mf_qk(c[0], kvb, ks, c[1], c[0] & 1) for kvb in range(2) for ks in range(4)] if c else [None] * 8
            spine += ([self.mf_pv(prev[0], db, prev[1], zero=prev[2]) for db in range(8)] + [self.mf_sum(prev[0], zero=prev[2])]) if prev else [None] * 9
            prev = c
        R = Region(spine); n = len(seq)
        R.G = lambda p, k: base[p] + k
        def gap(p, i):
            p += i // 16; i %= 16
            return base[p] + i if 0 <= p < n else None
        R.gap = gap
        for p in range(-1, n):
            c = pending if p == -1 else seq[p]
            if not c: continue
            for e_ in range(8):
                r = S_ + 8 * (c[0] & 1) + e_
                g = gap(p, 7 + 2 * e_)
                if g is not None: R.pin(g, f"v_exp_f32 {v(r)}, {v(r)}")
                g = gap(p, 8 + 2 * e_)
                if g is not None and (e_ & 1): R.pin(g, f"v_cvt_pk_bf16_f32 {v(P_ + 4*(c[0]&1) + e_//2)}, {v(r-1)}, {v(r)}")
        return R
    def put_vm(self, R, l, gaps):
        for (m0, d, adv), g in zip(l, gaps):
            if m0:
                assert not R.sal[g - 1], (g, R.sal[g - 1])
                R.sal[g - 1].append(m0)
            R.head[g].insert(0, d)
        for (m0, d, adv), g in zip(l, gaps):
            g += 1
            for x in adv: g = R.place(x, g, R.N - 1) + 1
    def std_iter(self, R, p0, p, side, endwait, jump=False, tail=(), tag=None):
        gE = R.G(p0 + 5, 16)
        R.sal[gE - 1].append(f"s_waitcnt {endwait} lgkmcnt(0)"); R.sal[gE].append("s_barrier")
        g = gE - 1 - len(tail)
        for x in tail: R.sal[g].append(x); g += 1
        vm = list(side) + self.l_t(p + 4, tag=tag, jump=jump)
        gaps = [R.G(p0 + i, 16) for i in range(5)][5 - len(vm):] if len(vm) <= 5 else None
        self.put_vm(R, vm, gaps)
        for i, r in enumerate(self.rdk(p + 1) + self.rdv(p + 1)):
            j = 4 * i
            if i >= 20: j = 4 * i - 14
            R.head[R.gap(p0, j)].append(r)
    def std_cells(self, p, first=False): return [(qb, p & 1, first) for qb in range(6)]
    def fin(self, X, prefix, hist=()):
        X = auto_nop(auto_lgkm(X), prefix)
        X, h = resolve_vm(X, hist)
        return X
    def loop_iter(self, p, kind, tail=()):
        R = self.cells_region(self.std_cells(p), pending=(5, (p - 1) & 1, False))
        if kind == 'A':
            self.std_iter(R, 0, p, self.l_q(1, "-", h0=p & 1), "vmcnt(10)", jump=True, tail=tail, tag="-")
            hc = (p - 1) & 1
            rd, ops, wr = self.cv_chunk(hc, 0)
            R.place(rd, 2, 8)
            cap, ge = R.stream(ops + [wr] + ([f"v_add_u32 {v(ORA)}, 1024, {v(ORA)}"] if hc else []), 14, 80)
            assert cap == 2
        else:
            hs = p & 1
            adv = [f"s_add_u32 {s(sOOFF)}, {s(sOOFF)}, 2048"] if hs else []
            self.std_iter(R, 0, p, [[None, self.o_store(a(TRK, 4), hs, sOOFF, pol='t'), adv]], "vmcnt(10)", tail=tail, tag="-")
            if hs: R.place(f"v_add_u32 {v(ORA)}, 1024, {v(ORA)}", 20, 30)
            R.place(self.o_read(a(TRK, 4), hs ^ 1, 0), 36, 46)
        return R.lines()

    def build(self):
        e = self.e; es = self.es
        e("s_cmp_ge_u32 s2, 256"); e("s_cbranch_scc1 L_end")
        e("s_load_dwordx4 s[4:7], s[0:1], 0"); e("s_load_dwordx4 s[8:11], s[0:1], 16")
        if self.diag:
            e("s_load_dwordx4 s[12:15], s[0:1], 32"); e(f"s_memrealtime {s(96,2)}")
        es(self.st(0))
        e("v_lshrrev_b32 v1, 6, v0"); e("v_and_b32 v2, 63, v0")
        e(f"v_readfirstlane_b32 {s(sWAVE)}, v1")
        if self.opt.get('pf', 16):
            e("s_getpc_b64 s[62:63]")
            self.label("L_pc")
            e("s_lshr_b32 s3, s2, 3"); e(f"s_and_b32 s3, s3, {self.opt.get('pf', 16) - 1}"); e("s_lshl_b32 s3, s3, 12")
            e("v_lshlrev_b32 v3, 4, v0"); e("v_add_u32 v3, s3, v3")
            e("v_min_u32 v3, L_end-L_pc-16, v3")
            e("global_load_dwordx4 v[28:31], v3, s[62:63]")
        e("v_lshrrev_b32 v5, 3, v2"); e("v_and_b32 v6, 6, v5"); e("v_and_b32 v7, 7, v2")
        e("v_xor_b32 v6, v6, v7"); e("v_lshlrev_b32 v6, 4, v6"); e("v_lshrrev_b32 v8, 3, v0")
        e(f"v_lshl_add_u32 {v(DMAOFF)}, v8, 8, v6")
        e(f"s_lshl_b32 {s(sW1K)}, {s(sWAVE)}, 10")
        e(f"s_mul_i32 {s(sQBASE)}, {s(sWAVE)}, 24576"); e(f"s_add_u32 {s(sQBASE)}, {s(sQBASE)}, {LDS_Q}")
        e(f"s_and_b32 {s(sTMP)}, s2, 7"); e(f"s_lshl_b32 {s(sTMP)}, {s(sTMP)}, 5")
        e(f"s_lshr_b32 {s(sT2)}, s2, 4"); e(f"s_add_u32 {s(sTMP)}, {s(sTMP)}, {s(sT2)}")
        e(f"s_mul_i32 {s(sH0)}, {s(sTMP)}, {HEAD_BYTES}"); e(f"s_add_u32 {s(sH1)}, {s(sH0)}, {16 * HEAD_BYTES}")
        e(f"s_bfe_u32 {s(sT2)}, s2, 0x10003")
        e(f"s_mul_i32 {s(sR0)}, {s(sT2)}, 384"); e(f"s_sub_u32 {s(sR1)}, 384, {s(sR0)}")
        for srd in (SRD_K, SRD_V):
            e(f"s_mov_b32 {s(srd+2)}, {TENSOR_BYTES}"); e(f"s_mov_b32 {s(srd+3)}, 0x20000")
        for srd in (SRD_Q, SRD_O):
            e(f"s_mov_b32 {s(srd+2)}, {HEAD_BYTES}"); e(f"s_mov_b32 {s(srd+3)}, 0x20000")
        e(f"s_mov_b32 {s(sKV)}, {s(sH0)}"); e(f"s_mov_b32 {s(sPOS)}, 0")
        e("s_waitcnt lgkmcnt(0)")
        for srd, ptr in ((SRD_K, 6), (SRD_V, 8)):
            e(f"s_mov_b32 {s(srd)}, {s(ptr)}"); e(f"s_mov_b32 {s(srd+1)}, {s(ptr+1)}")
        X = self.flat(self.l_kv(0, 0, "T0")) + self.cap(lambda: self.setup_qdma(sH0, sR0))
        X += self.flat(self.l_q(4, "Q0") + self.l_kv(0, 1, "T0", adv=True) + self.l_q(4, "Q1") + self.l_q(4, "Q2"))
        def consts():
            e("v_and_b32 v3, 15, v2"); e("v_lshrrev_b32 v4, 4, v2")
            e("v_xor_b32 v6, v5, v7"); e("v_lshlrev_b32 v6, 4, v6"); e(f"v_lshl_add_u32 {v(OST)}, v5, 8, v6")
            e(f"v_lshlrev_b32 {v(ORA)}, 4, v2"); e(f"v_add_u32 {v(ORA)}, {s(sQBASE)}, {v(ORA)}")
            e("v_and_b32 v5, 6, v3"); e("v_xor_b32 v6, v4, v5"); e("v_lshlrev_b32 v6, 4, v6")
            e(f"v_lshl_add_u32 {v(KA)}, v3, 7, v6"); e(f"v_xor_b32 {v(KA+1)}, 64, {v(KA)}")
            e(f"v_add_u32 {v(QRA)}, {s(sQBASE)}, {v(KA)}"); e(f"v_add_u32 {v(QRA+1)}, {s(sQBASE)}, {v(KA+1)}")
            e("v_lshrrev_b32 v5, 2, v2"); e("v_and_b32 v6, 6, v5"); e("v_lshlrev_b32 v6, 4, v6")
            e("v_and_b32 v7, 3, v2"); e("v_lshlrev_b32 v7, 3, v7"); e("v_lshl_add_u32 v7, v5, 7, v7")
            e(f"v_add_u32 {v(VA)}, v6, v7")
            for i in range(1, 4): e(f"v_xor_b32 {v(VA+i)}, {32*i}, {v(VA)}")
            e("v_mov_b32 v5, 0x3f803f80")
            for i in range(4): e(f"v_accvgpr_write_b32 {a(ONES+i)}, v5")
            cbits = hex(f32bits(math.log2(math.e) / math.sqrt(128.0)))
            e(f"s_mov_b32 {s(sSCALE)}, {cbits}"); e(f"s_mov_b32 {s(sSCALE+1)}, {cbits}")
            e(f"s_mov_b32 {s(sTHR)}, {hex(f32bits(2.0**64))}")
            e(f"s_mov_b64 {s(sBAD,2)}, 0"); e(f"s_mov_b32 {s(sFLAGS)}, 0")
            big = hex(f32bits(float('inf'))); neg = hex(f32bits(-1e30))
            e(f"s_cmp_eq_u32 {s(sWAVE)}, 3"); e(f"s_cselect_b32 {s(sTMP)}, {neg}, {big}") if False else None
            e(f"s_mov_b32 {s(sT2)}, {big}"); e(f"s_mov_b32 {s(sT3)}, {neg if self.opt.get('zp', 1) else big}")
            e(f"s_cmp_eq_u32 {s(sWAVE)}, 3"); e(f"s_cselect_b32 {s(sT3)}, {s(sT3)}, {s(sT2)}")
            e(f"s_cmp_eq_u32 {s(sR0)}, 0")
            e(f"s_cselect_b32 {s(sPAD)}, {s(sT2)}, {s(sT3)}"); e(f"s_cselect_b32 {s(sPAD1)}, {s(sT3)}, {s(sT2)}")
            self.setup_out(sH0, sR0)
            for i in range(32): e(f"v_mov_b32 {v(O_ + 160 + i)}, 0")
            for i in range(4): e(f"v_accvgpr_write_b32 {a(LACC + 20 + i)}, 0")
        X += self.cap(consts)
        nxt = {0: self.flat(self.l_q(4, "Q3")), 1: self.flat(self.l_q(4, "Q5")), 2: self.flat(self.l_t(1)),
               3: self.cap(lambda: self.setup_qdma(sH1, sR1)) + self.flat(self.l_q(2, "QN") + self.l_kv(2, 0, "T2")),
               4: self.flat(self.l_kv(2, 1, "T2", adv=True) + self.l_kv(3, 0, "T3")),
               5: self.flat(self.l_kv(3, 1, "T3", adv=True) + self.l_q(1, "QN"))}
        R = self.cells_region(self.std_cells(0, True))
        gE = R.G(5, 16)
        R.sal[gE - 1].append("s_waitcnt vmcnt(@T2) lgkmcnt(0)"); R.sal[gE].append("s_barrier")
        self.put_vm(R, self.l_t(4), [R.G(5, k) for k in (2, 4, 6, 8)])
        R.place_seq(self.rdk(1) + self.rdv(1), R.G(5, 0), R.G(5, 12))
        for qb in range(6):
            t = O_ + 32 * min(qb, 4)
            X += [f"s_waitcnt vmcnt(@Q{qb})"] + self.q_rd(qb, t)
            X += nxt[qb]
            X += self.q_conv(qb, t, t + 16)
            if qb == 0: X += ["s_waitcnt vmcnt(@T0)", "s_barrier"] + self.rdk(0) + self.rdv(0) + self.flat(self.l_q(4, "Q4"))
            X += self.m_mfma(qb, 0)
            if qb == 5: X += ["s_waitcnt vmcnt(@T1)", "s_barrier"] + self.st(1)
            X += self.m_valu(qb, pad=sPAD)
            sub = Region([]); g0 = R.G(qb, 0)
            for g in range(g0, g0 + 17):
                if R.mf[g]: X.append(R.mf[g])
                X += R.sal[g] + R.head[g] + R.vec[g]
        X += self.st(5)
        pre = [x.strip() for x in self.L]
        es(self.fin(X, pre))
        cs = len(self.L)
        def emit_loop(name, kind, exitpos, exitlabel):
            body = []
            its = [self.loop_iter(1, kind, tail=[f"s_cmp_eq_u32 {s(sPOS)}, {exitpos}"]), self.loop_iter(2, kind), self.loop_iter(3, kind), self.loop_iter(0, kind)]
            its = [auto_lgkm(x) for x in its]
            for k in range(4): its[k] = auto_nop(its[k], its[k - 1])
            if self.opt.get('al'): self.L.append(f".p2align {self.opt['al']}")
            self.label(name)
            a0 = len(self.L); es(its[0]); e(f"s_cbranch_scc1 {exitlabel}"); a1 = len(self.L)
            es(its[1] + its[2] + its[3]); e(f"s_branch {name}")
            return a0, a1, len(self.L)
        A0, A1, A2 = emit_loop("L_loopA", 'A', 26, "L_trans")
        self.label("L_trans")
        cells = self.std_cells(22) + self.std_cells(23, True) + self.std_cells(24)
        pre_m = {5 + qb: self.m_mfma(qb, 23 & 1) for qb in range(6)}
        R = self.cells_region(cells, pending=(5, 21 & 1, False), pre=pre_m)
        self.std_iter(R, 0, 22, [], "vmcnt(@T24)")
        self.std_iter(R, 6, 23, [], "vmcnt(@T25)")
        self.std_iter(R, 12, 24, [[None, self.o_store(a(TRK, 4), 0, sOOFF, pol='t'), []]], "vmcnt(@T26)")
        G = R.G
        c21 = self.cv_chunk(1, 0); c22 = self.cv_chunk(0, 1); c23 = self.cv_chunk(1, 1)
        R.place(c21[0], 2, 6)
        _, g = R.stream(c21[1] + [c21[2], "s_waitcnt vmcnt(@QL)", c22[0]], 10, G(1, 6))
        _, g = R.stream(c22[1] + [c22[2], c23[0]], g + 6, G(2, 2))
        _, g = R.stream(c23[1] + [c23[2]] + self.mk_owa() + self.cap(self.reset_ora), g + 6, G(3, 0))
        for qb in range(6):
            lo = max(G(qb, 9), g + 1 if qb == 5 else 0)
            R.place_seq(self.q_rd(qb, 0, direct=True), lo, lo + 14)
        for qb in range(6):
            R.stream([x for x in self.m_valu(qb, pad=sPAD1) if not x.startswith("s_nop")], G(5 + qb, 1), G(5 + qb, 15))
        ew = self.opt.get('ew', 27)
        for qb in range(6):
            lo = max(g + 1, G(qb + 1, 16) + 4)
            hi = min(lo + ew, G(7 + qb, 6))
            ops = self.e_core(qb, False)
            if qb == 5: ops = ops + self.flag_item(0)
            cap, g = R.stream(ops, lo, hi)
        R.place(self.o_read(a(TRK, 4), 0, 0), G(10, 0), G(10, 12))
        R.place(self.o_read(a(TRK, 4), 1, 0), G(14, 2), G(14, 12))
        for x in self.st(7): R.vec[G(12, 0)].append(x)
        hist = ["-"] + ["T24"] * 4 + ["QL"] + ["T25"] * 4
        X = self.st(6) + R.lines() + self.st(2) + (["s_memrealtime s[90:91]"] if self.diag else [])
        t0 = len(self.L)
        es(self.fin(X, [x.strip() for x in self.L[A0:A1]], hist))
        t1 = len(self.L)
        B0, B1, B2 = emit_loop("L_loopB", 'B', 46, "L_final")
        self.label("L_final")
        pos = [42, 43, 44, 45]
        cells = [(2 * pr + i, p & 1, False) for pr in range(3) for p in pos for i in range(2)]
        R = self.cells_region(cells, pending=(5, 41 & 1, False), drain=True)
        R.sal[32].append("s_waitcnt vmcnt(@T44)"); R.sal[33].append("s_barrier")
        R.sal[66].append("s_waitcnt vmcnt(@T45)"); R.sal[67].append("s_barrier")
        for u in range(11):
            p = pos[(u + 1) & 3]
            R.place_seq(self.rdk(p), 34 * u, 34 * u + 30)
            R.place_seq(self.rdv(p), 34 * u + 17, 34 * u + 52)
        g = 4
        for c in range(18, 24):
            if c == 22: g = R.place(f"s_add_u32 {s(sOOFF)}, {s(sOOFF)}, 4096", g, g + 8) + 1
            g = R.place(self.o_store(a(TRK, 4), c & 1, sOOFF, Roff=((c - 18) >> 1) & 1, pol='t'), g, g + 6) + 2
            if c < 23: g = R.place(self.o_read(a(TRK, 4), (c + 1) & 1, (c + 1 - 18) >> 1), g, g + 6) + 10
        for x in self.cap(lambda: (self.setup_out(sH1, sR1), self.reset_ora())): g = R.place(x, g, 135) + 1
        assert g < 136, g
        span = self.opt.get('espan', 50); sp = self.opt.get('ssp', 12)
        gs = 0
        for pr in range(2):
            g0 = 136 * (pr + 1)
            ge = g0 + 2
            for i in range(2):
                qb = 2 * pr + i
                rd, st, adv = self.e_out(qb)
                lo = max(ge + 1, g0 + 20 * i)
                cap, ge = R.stream(self.e_core(qb, False) + rd, lo, lo + span)
                gs = max(gs, ge + 8)
                for x in st: gl = R.place(x, gs, gs + 4); gs = gl + sp
                ga = R.place(adv, gl + 1, R.N - 1)
                assert gl < ga < R.N - 1
                gs = max(gs, ga + 1)
        X = self.st(3) + (["s_memrealtime s[92:93]"] if self.diag else []) + R.lines()
        rd4, st4, adv = self.e_out(4); rd5, st5, _ = self.e_out(5)
        c5 = self.e_core(5, True)
        X += self.e_core(4, True) + rd4 + c5[:20] + st4 + [adv] + c5[20:] + rd5 + st5 + self.flag_item(1) + self.st(4)
        hist = ["-"] + ["T44"] * 4 + ["-"] + ["T45"] * 4
        f0 = len(self.L)
        es(self.fin(X, [x.strip() for x in self.L[B0:B1]], hist))
        f1 = len(self.L)
        import slowpath
        sp0, sp1 = slowpath.emit_slow(self, sys.modules[__name__])
        if self.diag:
            e("s_waitcnt vmcnt(0)")
            es(self.st(8))
            e(f"s_memrealtime {s(98,2)}")
            e("s_waitcnt lgkmcnt(0)")
            e(f"s_mov_b32 {s(STAMP0+18)}, s96"); e(f"s_mov_b32 {s(STAMP0+19)}, s98")
            e("s_mov_b32 s20, s14"); e("s_mov_b32 s21, s15"); e("s_mov_b32 s22, 0x10000000"); e("s_mov_b32 s23, 0x20000")
            e("v_mov_b32 v0, 0")
            for i in range(20): e(f"v_writelane_b32 v0, {s(STAMP0+i)}, {i}")
            e("s_sub_u32 s92, s92, s90"); e("v_writelane_b32 v0, s92, 63")
            e(f"s_lshl_b32 s3, s2, 2"); e(f"s_add_u32 s3, s3, {s(sWAVE)}"); e("s_lshl_b32 s3, s3, 8")
            e("v_mbcnt_lo_u32_b32 v1, -1, 0"); e("v_mbcnt_hi_u32_b32 v1, -1, v1"); e("v_lshlrev_b32 v1, 2, v1")
            e("buffer_store_dword v0, v1, s[20:23], s3 offen")
        self.label("L_end")
        e("s_endpgm")
        L = self.L
        errs = hazcheck.check(L[:A2] + L[A0:A1] + L[t0:B2] + L[B0:B1] + L[f0:f1], "path")
        errs += hazcheck.check(L[sp0:sp1] + L[sp0:sp1], "slow")
        return errs
    def text(self):
        hdr = open("standalone__gqa_softmax__near_ridge.s.ref").read().split("; Override")[0]
        out = hdr + f"; @launch grid=(256,1,1) block=(256,1,1) lds={LDS_TOTAL}\n"
        out += f'.amdgcn_target "amdgcn-amd-amdhsa--gfx950"\n.text\n.globl {KN}\n.p2align 8\n.type {KN},@function\n{KN}:\n'
        out += "\n".join(self.L) + "\n"
        out += f""".section .rodata,"a"
.p2align 6
.amdhsa_kernel {KN}
  .amdhsa_next_free_vgpr 512
  .amdhsa_next_free_sgpr 102
  .amdhsa_accum_offset 256
  .amdhsa_group_segment_fixed_size 0
  .amdhsa_kernarg_size 48
  .amdhsa_user_sgpr_count 2
  .amdhsa_user_sgpr_kernarg_segment_ptr 1
  .amdhsa_system_sgpr_workgroup_id_x 1
.end_amdhsa_kernel
"""
        return out

if __name__ == "__main__":
    import argparse
    ap = argparse.ArgumentParser()
    ap.add_argument("-o", default="k.s"); ap.add_argument("--diag", action="store_true"); ap.add_argument("--opt", default="")
    A = ap.parse_args()
    opt = {}
    for kv in A.opt.split(","):
        if kv:
            k_, _, v_ = kv.partition("=")
            opt[k_] = int(v_) if v_ else 1
    g = Gen(diag=A.diag, opt=opt)
    errs = g.build()
    for x in errs[:20]: print(x)
    print("hazard errors:", len(errs))
    if opt.get('rt'): g.L = [x.replace("s_memtime", "s_memrealtime") for x in g.L]
    open(A.o, "w").write(g.text())
```
